```python
import torch

def _softmax(x, axis=-1):
    return torch.softmax(x, dim=axis)
def _gelu(x):
    return torch.nn.functional.gelu(x, approximate="tanh")
def _silu(x):
    return torch.nn.functional.silu(x)
def _sigmoid(x):
    return torch.sigmoid(x)
def _layernorm(x, axis=-1, eps=1e-5):
    m = x.mean(dim=axis, keepdim=True)
    v = x.var(dim=axis, keepdim=True, unbiased=False)
    return (x - m) / torch.sqrt(v + eps)
def _scatter_add(tgt, idx, src, axis=0):
    return tgt.clone().index_add_(axis, idx, src)
def _segment_sum(src, seg, n):
    out = torch.zeros((n,) + src.shape[1:], dtype=src.dtype)
    return out.index_add_(0, seg, src)
def _pad(x, pw):
    flat = tuple(v for pair in reversed(pw) for v in pair)
    return torch.nn.functional.pad(x, flat)

kernel_name = 'recurrent_scan__sliding_block_cached__swiglu_ffn__decode'

def setup_inputs():

    _w = (lambda a: (lambda t: t.to(torch.bfloat16) if t.is_floating_point() else t)(torch.as_tensor(a)))
    def _A_setup():
        B, Sq, D = 2, 1, 512
        Hq, Hkv, Sk, Dh = 32, 8, 32768, 128
        assert Hq % Hkv == 0, (Hq, Hkv)
        return {
            "x": _w((lambda *s: torch.randn(*s, dtype=torch.bfloat16) * 0.05)(B, Sq, D)),
            "k_cache": _w((lambda *s: torch.randn(*s, dtype=torch.bfloat16) * 1.6)(B, Hkv, Sk, Dh)),
            "v_cache": _w((lambda *s: torch.randn(*s, dtype=torch.bfloat16) * 0.2)(B, Hkv, Sk, Dh)),
            "wq": _w((lambda *s: torch.randn(*s, dtype=torch.bfloat16) * 1.6)(D, Hq * Dh) * (D ** -0.5)),
            "wo": _w((lambda *s: torch.randn(*s, dtype=torch.bfloat16) * 0.2)(Hq * Dh, D) * ((Hq * Dh) ** -0.5)),
        }
    _A_in = _A_setup()

    def _B_setup():
        B, S, D, F = 2, 1, 512, 1792
        return {
            "x": _w((lambda *s: torch.randn(*s, dtype=torch.bfloat16) * 0.05)(B, S, D)),
            "w_gate": _w((lambda *s: torch.randn(*s, dtype=torch.bfloat16) * 0.1)(D, F)),
            "w_up": _w((lambda *s: torch.randn(*s, dtype=torch.bfloat16) * 0.1)(D, F)),
            "w_down": _w((lambda *s: torch.randn(*s, dtype=torch.bfloat16) * 0.1)(F, D)),
        }
    _B_in = _B_setup()

    return {
        "A_x": _A_in["x"],
        "A_k_cache": _A_in["k_cache"],
        "A_v_cache": _A_in["v_cache"],
        "A_wq": _A_in["wq"],
        "A_wo": _A_in["wo"],
        "B_x": _B_in["x"],
        "B_w_gate": _B_in["w_gate"],
        "B_w_up": _B_in["w_up"],
        "B_w_down": _B_in["w_down"],
    }

def reference(A_x, A_k_cache, A_v_cache, A_wq, A_wo, B_x, B_w_gate, B_w_up, B_w_down):
    def _A_ref(x, k_cache, v_cache, wq, wo):
        B, Sq, D = x.shape
        Hq, Dh = 32, 128
        Hkv, Sk = k_cache.shape[1], k_cache.shape[2]
        W = min(4096, max(256, Sk // 4))
        rep = Hq // Hkv
        q = (lambda x, *d: x.permute(*d))((x @ wq).reshape(B, Sq, Hq, Dh), 0, 2, 1, 3)
        k = (lambda x, n, axis: torch.repeat_interleave(x, n, dim=axis))(k_cache[:, :, Sk - W:, :], rep, axis=1)
        v = (lambda x, n, axis: torch.repeat_interleave(x, n, dim=axis))(v_cache[:, :, Sk - W:, :], rep, axis=1)
        scores = torch.einsum("bhqd,bhkd->bhqk", q, k) * (Dh ** -0.5)
        p = _softmax(scores, axis=-1)
        o = torch.einsum("bhqk,bhkd->bhqd", p, v)
        return (lambda x, *d: x.permute(*d))(o, 0, 2, 1, 3).reshape(B, Sq, Hq * Dh) @ wo

    def _B_ref(x, w_gate, w_up, w_down):
        g = _silu(x @ w_gate)
        u = x @ w_up
        return (g * u) @ w_down

    x = A_x
    xn = _layernorm(x, axis=-1)
    s = _A_ref(xn, A_k_cache, A_v_cache, A_wq, A_wo)
    g = _silu(_B_ref(xn, B_w_gate, B_w_up, B_w_down))
    return x + s * g
```

```python
KN = 'recurrent_scan__sliding_block_cached__swiglu_ffn__decode'
class A:
    def __init__(self): self.l = []
    def __call__(self, s):
        for x in s.strip('\n').split('\n'): self.l.append(x)
    def text(self): return '\n'.join(self.l) + '\n'
def header(launch, extra=''):
    return f'''{launch}
{extra}
.amdgcn_target "amdgcn-amd-amdhsa--gfx950"
.text
'''
def kstart(name):
    return f'''.globl {name}
.p2align 8
.type {name},@function
{name}:
'''
def kdesc(name, vgpr, sgpr=102, accum=None):
    accum = accum or ((vgpr + 3)//4*4)
    return f'''.section .rodata,"a"
.p2align 6
.amdhsa_kernel {name}
  .amdhsa_next_free_vgpr {vgpr}
  .amdhsa_next_free_sgpr {sgpr}
  .amdhsa_accum_offset {min(accum,256)}
  .amdhsa_group_segment_fixed_size 0
  .amdhsa_kernarg_size 96
  .amdhsa_user_sgpr_count 2
  .amdhsa_user_sgpr_kernarg_segment_ptr 1
  .amdhsa_system_sgpr_workgroup_id_x 1
.end_amdhsa_kernel
.text
'''
TSB = 70
def ts(i): return f's_memrealtime s[{TSB+2*i}:{TSB+2*i+1}]'
def ts_store(n, ws_lo, wave_sgpr, tmpv=1, srd=96):
    s = f'''s_waitcnt lgkmcnt(0)
s_add_u32 s{srd}, s{ws_lo}, 0x10000000
s_addc_u32 s{srd+1}, s{ws_lo+1}, 0
s_mov_b32 s{srd+2}, {256*16*64}
s_mov_b32 s{srd+3}, 0x20000
s_lshl_b32 s3, s2, 4
s_add_u32 s3, s3, s{wave_sgpr}
s_lshl_b32 s3, s3, 6
s_mov_b64 exec, 1
v_mov_b32 v{tmpv}, s3
'''
    for i in range(n):
        s += f'v_mov_b32 v{tmpv+1}, s{TSB+2*i}\nbuffer_store_dword v{tmpv+1}, v{tmpv}, s[{srd}:{srd+3}], 0 offen offset:{4*i}\ns_waitcnt vmcnt(0)\n'
    return s
```

```python
import re
TRANS = ('v_exp_f32','v_log_f32','v_rcp_f32','v_rsq_f32','v_sqrt_f32','v_sin_f32','v_cos_f32')
def regs(op):
    op = op.strip()
    op = op.replace('-', '').replace('abs(', '').replace(')', '').replace('|', '')
    m = re.fullmatch(r'([vsa])\[(\d+):(\d+)\]', op)
    if m: return {m.group(1)+str(i) for i in range(int(m.group(2)), int(m.group(3))+1)}
    m = re.fullmatch(r'([vsa])(\d+)', op)
    if m: return {op}
    if op == 'vcc': return {'vcc'}
    if op in ('vcc_lo','vcc_hi'): return {'vcc'}
    if op == 'exec': return {'exec'}
    if op == 'm0': return {'m0'}
    return set()
def parse(line):
    s = line.split(';')[0].strip()
    if not s or s.endswith(':') or s.startswith('.'): return None
    p = s.split(None, 1); mn = p[0]; rest = p[1] if len(p) > 1 else ''
    ops = []; cur = ''; d = 0
    for ch in rest:
        if ch == '[': d += 1
        if ch == ']': d -= 1
        if ch == ',' and d == 0: ops.append(cur); cur = ''
        else: cur += ch
    if cur: ops.append(cur)
    mods = ''
    if ops:
        last = ops[-1].strip().split(None, 1)
        ops[-1] = last[0]
        if len(last) > 1: mods = last[1]
    R = [regs(o) for o in ops]
    W = set(); U = set(); k = 'other'
    base = mn.replace('_e32','').replace('_e64','').replace('_dpp','').replace('_sdwa','')
    if mn.startswith('v_mfma'):
        k = 'mfma'; W = R[0]; U = R[1] | R[2] | R[3]
        return dict(mn=base, k=k, W=W, U=U, A=R[1] | R[2], C=R[3], mods=mods)
    if mn.startswith('v_'):
        k = 'valu'
        if base.startswith('v_permlane') and 'swap' in base: W = R[0] | R[1]; U = R[0] | R[1]
        elif base.startswith('v_cmp'): W = R[0]; U = set().union(*R[1:])
        elif base in ('v_add_co_u32','v_addc_co_u32','v_sub_co_u32'): W = R[0] | R[1]; U = set().union(*R[2:])
        else:
            W = R[0]; U = set().union(*R[1:]) if len(R) > 1 else set()
            if base in ('v_fmac_f32','v_dot2c_f32_bf16','v_writelane_b32') or 'dpp' in mn: U |= R[0]
    elif mn.startswith('ds_'):
        k = 'ds'
        if mn.startswith('ds_read') or mn.startswith('ds_bpermute') or mn.startswith('ds_swizzle'): W = R[0]; U = set().union(*R[1:])
        else: U = set().union(*R)
    elif mn.startswith('buffer_') or mn.startswith('global_'):
        k = 'vmem'
        if 'lds' in mods.split() or '_lds_' in mn: U = set().union(*R) | {'m0'}; k = 'dma'
        elif '_load' in mn: W = R[0]; U = set().union(*R[1:])
        else: U = set().union(*R)
    elif mn.startswith('s_'):
        k = 'salu'
        if mn.startswith(('s_cmp','s_cbranch','s_branch','s_waitcnt','s_barrier','s_nop','s_sleep','s_endpgm','s_setprio','s_bitcmp')): U = set().union(*R) if R else set()
        else: W = R[0] if R else set(); U = set().union(*R[1:]) if len(R) > 1 else set()
    return dict(mn=base, k=k, W=W, U=U, mods=mods, dpp=('dpp' in mn), wide=(k == 'vmem' and 'store' in mn and ('x4' in mn or 'x3' in mn)), data=(R[0] if k == 'vmem' and 'store' in mn else set()))
def need(p, c):
    n = 0
    pv = {r for r in p['W'] if r[0] in 'va' and r != 'vcc'}; ps = {r for r in p['W'] if r[0] == 's' or r == 'vcc'}
    if p['k'] == 'valu':
        if pv & c['U']:
            if c['mn'].startswith('v_permlane'): n = max(n, 2)
            if c.get('dpp'): n = max(n, 2)
            if c['k'] == 'mfma': n = max(n, 2)
            if c['mn'] in ('v_readlane_b32','v_readfirstlane_b32'): n = max(n, 1)
            if p['mn'] in TRANS and c['k'] in ('valu', 'mfma', 'ds', 'vmem'): n = max(n, 1)
        if ps & c['U']:
            if c['k'] == 'valu': n = max(n, 4 if c['mn'] in ('v_readlane_b32','v_writelane_b32') else 2)
            if c['k'] in ('vmem','dma'): n = max(n, 5)
            if c['k'] == 'salu': n = max(n, 1)
        if 'vcc' in ps and c['k'] == 'valu' and c['mn'] in ('v_cndmask_b32','v_addc_co_u32') and 'vcc' in c['U']: n = max(n, 2)
    if p['k'] == 'mfma':
        passes = 8 if '32x32' in p['mn'] else 4
        t = {4: (6, 8, 3), 8: (10, 12, 7)}[passes]
        if c['k'] == 'mfma':
            if p['W'] & c['A']: n = max(n, t[1])
            if p['W'] & c['C'] and p['W'] != c['C']: n = max(n, t[0])
            if p['W'] & c['W'] and p['W'] != c['C']: n = max(n, t[1])
        else:
            if p['W'] & (c['U'] | c['W']): n = max(n, t[1])
            if c['k'] == 'valu' and p['C'] & c['W']: n = max(n, t[2])
    if p['k'] == 'salu' and 'm0' in p['W'] and c['k'] == 'dma': n = max(n, 1)
    if p.get('wide') and c['W'] & p['data']: n = max(n, 2)
    return n
def pad(text):
    out = []; hist = []
    for line in text.split('\n'):
        c = parse(line)
        if c is None:
            out.append(line); continue
        req = 0; dist = 0
        for p in reversed(hist):
            r = need(p, c) - dist
            req = max(req, r)
            dist += p['st']
            if dist >= 20: break
        if req > 0:
            out.append(f's_nop {req-1}')
            hist.append(dict(mn='s_nop', k='salu', W=set(), U=set(), st=req))
        c['st'] = int(line.split()[1]) + 1 if c['mn'] == 's_nop' else 1
        hist.append(c); out.append(line)
    return '\n'.join(out)
```

```python
import sys
from asmlib import *
from hz import pad

EPOCH=0; EQ=0x10000; EF=0x30000; DUMMY=0x4C000; EO=0x80000; ES=0x100000; WSZ=0x180000
LK=0; LV=65536; LW1=98304; LWO=131072; LWD=147456; MB=155648
XN=MB; LQ=MB+2048; LP=MB+3072; LZ=MB+5120; FL=MB+6144; LO=MB+6400; LH=MB+6912; MX=MB+7168; LS=MB+7232
F_S1, F_W1, F_S2, F_S3, F_S4, F_K = [FL+16*i for i in range(6)]
LDS_TOTAL=163840
TAGINC=0x9E3779B9

class V:
    def __init__(self, start=1): self.n = start; self.m = {}
    def __call__(self, name, cnt=1, align=1):
        if name in self.m: return self.m[name]
        self.n = (self.n + align-1)//align*align
        self.m[name] = self.n; self.n += cnt
        return self.m[name]
def vr(a, n): return f'v[{a}:{a+n-1}]'

def gen(diag=None, qsleep=16, rot='hj', kwait=11, st='sc1', outst='sc1', spin_sleep=1):
    a = A()
    hdr_ref = open('cdna_kernels/%s.s.ref' % KN).read().split('; Override')[0] if diag != 'local' else ''
    names = 'start,karg,x,w1,pub1,q,kready,sm,b1,pubo,ogot,b2,pubs,fin'
    extra = f'; ts nwg=256 nwave=8 names={names}' if diag == 'ws' else ''
    a(header(f'; @launch grid=(256,1,1) block=(512,1,1) lds={LDS_TOTAL}', extra))
    a(kstart(KN+'_kernel'))
    T = (lambda i: a(ts(i))) if diag else (lambda i: None)
    T(0)
    a(f'''s_cmp_ge_u32 s2, 256
s_cbranch_scc1 L_end
s_load_dwordx16 s[8:23], s[0:1], 0
s_load_dwordx8 s[24:31], s[0:1], 64
v_lshrrev_b32 v1, 6, v0
v_and_b32 v0, 63, v0
v_mov_b32 v4, 0
v_readfirstlane_b32 s4, v1
v_mov_b32 v5, 0
v_mov_b32 v6, 0
v_mov_b32 v7, 0
v_lshlrev_b32 v2, 4, v0
v_add_u32 v2, {LZ}, v2
v_lshlrev_b32 v3, 2, v0
v_add_u32 v3, {FL}, v3
s_and_b32 s5, s2, 7
s_lshr_b32 s6, s2, 3
s_mov_b32 s68, 400000
s_cmp_lg_u32 s4, 0
s_cbranch_scc1 L_noinit
ds_write_b128 v2, v[4:7]
ds_write_b32 v3, v4
L_noinit:
s_waitcnt lgkmcnt(0)
s_barrier
''')
    T(1)
    a('s_cmp_ge_u32 s4, 4\ns_cbranch_scc1 L_loader')
    lab = [0]
    def spin(flag_addr_v, off, tmp):
        lab[0] += 1; L = f'L_sp{lab[0]}'
        a(f'''{L}:
ds_read_b128 {vr(tmp,4)}, v{flag_addr_v} offset:{off}
s_waitcnt lgkmcnt(0)
v_and_b32 v{tmp}, v{tmp}, v{tmp+1}
v_and_b32 v{tmp+2}, v{tmp+2}, v{tmp+3}
v_and_b32 v{tmp}, v{tmp}, v{tmp+2}
v_cmp_ne_u32 vcc, 0, v{tmp}
s_cbranch_vccnz {L}_d
s_sleep {spin_sleep}
s_sub_u32 s68, s68, 1
s_cbranch_scc0 {L}
s_mov_b32 s68, 0
{L}_d:''')
    v = V(8)
    vFL = v('FL'); vFLW = v('FLW'); vONE = v('ONE')
    tmp = v('tmp', 8, 4)
    X = v('X', 8, 4)
    def setflag(off): a(f'ds_write_b32 v{vFLW}, v{vONE} offset:{off-FL}')
    a(f'''s_setprio 2
s_load_dword s60, s[30:31], {EPOCH}
s_lshl_b32 s3, s5, 7
s_lshl_b32 s7, s6, 2
s_add_u32 s3, s3, s7
s_add_u32 s62, s8, s3
s_addc_u32 s63, s9, 0
s_load_dword s64, s[62:63], 0
s_load_dword s65, s[62:63], 1024
s_mov_b32 s36, s8
s_mov_b32 s37, s9
s_mov_b32 s38, 2048
s_mov_b32 s39, 0x20000
v_lshlrev_b32 v1, 4, v0
buffer_load_dwordx4 {vr(X,4)}, v1, s[36:39], 0 offen
buffer_load_dwordx4 {vr(X+4,4)}, v1, s[36:39], 0 offen offset:1024
s_cmp_lt_u32 s6, 16
s_cbranch_scc0 L_ffnunit
s_mov_b32 s40, s14
s_mov_b32 s41, s15
s_movk_i32 s52, 0x2000          ; stride
s_lshr_b32 s53, s6, 3           ; half
s_and_b32 s3, s6, 7
s_lshl_b32 s7, s3, 7
s_lshl_b32 s54, s5, 10
s_add_u32 s54, s54, s7          ; colbyte
s_lshl_b32 s55, s5, 14
s_lshl_b32 s7, s53, 12
s_add_u32 s55, s55, s7
s_lshl_b32 s7, s3, 9
s_add_u32 s55, s55, s7
s_add_u32 s55, s55, {EQ}
s_movk_i32 s56, 0x2000
s_mov_b32 s42, {255*8192+128}
s_branch L_unitdone
L_ffnunit:
s_mul_i32 s3, s5, 14
s_add_u32 s3, s3, s6
s_sub_u32 s3, s3, 16            ; idx
s_bitcmp1_b32 s3, 0
s_cselect_b32 s40, s22, s20
s_cselect_b32 s41, s23, s21
s_movk_i32 s52, 3584
s_bfe_u32 s53, s3, 0x10001      ; half
s_lshr_b32 s7, s3, 2            ; rg
s_lshl_b32 s54, s7, 7           ; colbyte
s_and_b32 s55, s3, 1
s_lshl_b32 s55, s55, 1
s_add_u32 s55, s55, s53
s_mul_i32 s55, s55, 28
s_add_u32 s55, s55, s7
s_lshl_b32 s55, s55, 10
s_add_u32 s55, s55, {EF}
s_movk_i32 s56, 512
s_mov_b32 s42, {255*3584+128}
s_cmp_lt_u32 s6, 30
s_cbranch_scc1 L_unitdone
s_mov_b32 s42, 0
s_mov_b32 s53, 0
s_mov_b32 s54, 0
s_mov_b32 s55, {DUMMY}
L_unitdone:
s_lshl_b32 s3, s53, 8
s_mul_i32 s3, s3, s52
s_add_u32 s3, s3, s54
s_add_u32 s40, s40, s3
s_addc_u32 s41, s41, 0
s_mov_b32 s43, 0x20000
v_lshrrev_b32 v2, 3, v0
v_lshrrev_b32 v3, 4, v0          ; (row>>1)&3
v_lshlrev_b32 v3, 1, v3
v_and_b32 v4, 7, v0
v_xor_b32 v3, v3, v4
v_lshlrev_b32 v3, 4, v3
v_mad_u32_u24 v2, v2, s52, v3    ; voffset
s_lshl_b32 s57, s52, 3           ; 8 rows
s_mul_i32 s58, s57, s4
s_lshl_b32 s57, s57, 2           ; step 32 rows
s_lshl_b32 s59, s4, 10
s_add_u32 s59, s59, {LW1}
''')
    for i in range(8):
        a(f's_mov_b32 m0, s59\ns_add_u32 s59, s59, 4096\nbuffer_load_dwordx4 v2, s[40:43], s58 offen nt lds\ns_add_u32 s58, s58, s57')
    a(f'''s_mov_b32 s44, s30
s_mov_b32 s45, s31
s_mov_b32 s46, {WSZ}
s_mov_b32 s47, 0x20000
s_mov_b32 s48, s26
s_mov_b32 s49, s27
s_mov_b32 s50, 2048
s_mov_b32 s51, 0x20000''')
    vTR = v('TR'); vTV = v('TV', 2); vKA = v('KA', 4); vAX = v('AX'); vAO = v('AO'); vAH = v('AH')
    vQB = v('QB', 4); vPB = v('PB', 2); vP1 = v('P1'); vGQ = v('GQ'); vGH = v('GH'); vPO = v('PO'); vGO = v('GO')
    vPS = v('PS'); vGS = v('GS'); vQW = v('QW'); vPW = v('PW'); vMX = v('MXa'); vHW = v('HW'); vOW = v('OW'); vOUT = v('OUT')
    a(f'''v_mov_b32 v{vFL}, {FL}
s_lshl_b32 s3, s4, 2
s_add_u32 s3, s3, {FL}
v_mov_b32 v{vFLW}, s3
v_mov_b32 v{vONE}, 1
v_lshrrev_b32 v1, 2, v0           ; l>>2
v_and_b32 v2, 3, v0               ; l&3
v_lshrrev_b32 v3, 4, v0           ; kg
v_and_b32 v4, 15, v0              ; n
v_bfe_u32 v5, v0, 3, 2            ; (l>>3)&3
v_xor_b32 v5, s4, v5
v_lshlrev_b32 v5, 5, v5
v_lshl_add_u32 v5, v1, 7, v5
v_lshl_add_u32 v5, v2, 3, v5
v_add_u32 v{vTR}, {LW1}, v5
s_lshl_b32 s3, s4, 1
v_and_b32 v5, 7, v1
v_xor_b32 v5, s3, v5
v_lshlrev_b32 v6, 8, v1
v_lshl_add_u32 v6, v2, 3, v6
v_add_u32 v6, {LV}, v6
v_lshl_add_u32 v{vTV}, v5, 5, v6
v_xor_b32 v5, 1, v5
v_lshl_add_u32 v{vTV+1}, v5, 5, v6
s_lshl_b32 s3, s4, 14
v_lshlrev_b32 v6, 8, v4
v_add_u32 v6, s3, v6
''')
    for ks in range(4):
        a(f'v_add_u32 v5, {4*ks}, v3\nv_xor_b32 v5, v5, v4\nv_lshl_add_u32 v{vKA+ks}, v5, 4, v6')
    a(f'''v_and_b32 v5, 1, v1               ; b(i)
s_lshl_b32 s3, s53, 9
s_add_u32 s3, s3, {XN}
v_lshlrev_b32 v6, 3, v3           ; kg*8
v_lshl_add_u32 v7, v5, 10, v6
v_add_u32 v{vAX}, s3, v7
v_lshl_add_u32 v7, v5, 8, v6
v_add_u32 v{vAO}, {LO}, v7
v_lshl_add_u32 v7, v5, 7, v6
v_add_u32 v{vAH}, {LH}, v7
v_and_b32 v5, 3, v1               ; n>>2
v_lshlrev_b32 v7, 8, v2
v_lshl_add_u32 v7, v3, 4, v7
v_add_u32 v7, {LQ}, v7
v_mov_b32 v{tmp}, {LZ}
''')
    for t in range(4):
        a(f'v_cmp_eq_u32 vcc, {t}, v5\nv_cndmask_b32 v{vQB+t}, v{tmp}, v7, vcc')
    a(f'v_lshl_add_u32 v7, v2, 9, v6\nv_add_u32 v7, {LP}, v7')
    for u in range(2):
        a(f'v_cmp_eq_u32 vcc, {u}, v5\nv_cndmask_b32 v{vPB+u}, v{tmp}, v7, vcc')
    a(f'''; publish-1 offset: dst + b*bstride + (16w+n)*8
s_lshl_b32 s3, s4, 7
s_add_u32 s3, s3, s55
v_and_b32 v5, 1, v3
v_mul_u32_u24 v5, s56, v5
v_lshl_add_u32 v5, v4, 3, v5
v_add_u32 v{vP1}, s3, v5
s_lshr_b32 s61, s6, 4             ; b
s_lshl_b32 s3, s5, 1
s_add_u32 s3, s3, s61
s_lshl_b32 s3, s3, 13
s_lshl_b32 s7, s4, 10
s_add_u32 s3, s3, s7
s_add_u32 s3, s3, {EQ}
v_lshlrev_b32 v5, 4, v0
v_add_u32 v{vGQ}, s3, v5
s_lshl_b32 s3, s4, 8
s_add_u32 s3, s3, {LQ}
v_lshlrev_b32 v5, 2, v0
v_add_u32 v{vQW}, s3, v5
s_sub_u32 s7, s6, 4
s_cselect_b32 s7, 0, s7           ; rg2
s_lshl_b32 s3, s7, 10
s_lshl_b32 s7, s4, 7
s_add_u32 s3, s3, s7
s_add_u32 s3, s3, {EF}
v_mul_u32_u24 v5, {28*1024}, v3
v_bfe_u32 v6, v0, 3, 1
v_lshl_add_u32 v5, v6, 9, v5
v_and_b32 v7, 7, v0
v_lshl_add_u32 v5, v7, 4, v5
v_add_u32 v{vGH}, s3, v5
s_lshl_b32 s3, s4, 5
s_add_u32 s3, s3, {LH}
v_lshlrev_b32 v5, 7, v6
v_lshl_add_u32 v5, v7, 2, v5
v_and_b32 v{tmp+1}, 1, v3
v_lshl_add_u32 v5, v{tmp+1}, 1, v5
v_add_u32 v{vHW}, s3, v5
s_lshr_b32 s3, s6, 3
s_lshl_b32 s7, s5, 2
s_add_u32 s66, s3, s7             ; hq
s_lshl_b32 s3, s66, 14
s_lshl_b32 s7, s4, 7
s_add_u32 s3, s3, s7
s_add_u32 s3, s3, {EO}
v_lshlrev_b32 v5, 13, v6
v_lshl_add_u32 v5, v3, 11, v5
v_lshl_add_u32 v5, v7, 4, v5
v_add_u32 v{vGO}, s3, v5
s_lshl_b32 s3, s4, 6
s_add_u32 s3, s3, {LO}
v_lshlrev_b32 v5, 8, v6
v_lshl_add_u32 v5, v7, 3, v5
v_lshl_add_u32 v5, v{tmp+1}, 2, v5
v_lshrrev_b32 v{tmp+2}, 5, v0
v_lshl_add_u32 v5, v{tmp+2}, 1, v5
v_add_u32 v{vOW}, s3, v5
s_lshl_b32 s3, s5, 16
s_lshl_b32 s7, s6, 9
s_add_u32 s3, s3, s7
s_lshl_b32 s7, s4, 7
s_add_u32 s3, s3, s7
s_add_u32 s3, s3, {EO}
v_lshlrev_b32 v5, 14, v2
v_and_b32 v6, 1, v1
v_lshl_add_u32 v5, v6, 6, v5
v_lshl_add_u32 v5, v3, 4, v5
v_add_u32 v{vPO}, s3, v5
s_lshl_b32 s3, s4, 7
s_add_u32 s3, s3, {LP}
v_lshlrev_b32 v5, 9, v2
v_and_b32 v6, 3, v1
v_lshl_add_u32 v5, v6, 5, v5
v_lshl_add_u32 v5, v3, 3, v5
v_add_u32 v{vPW}, s3, v5
v_lshlrev_b32 v5, 2, v2
v_add_u32 v{vMX}, {MX}, v5
s_and_b32 s3, s6, 7
s_lshl_b32 s3, s3, 6
s_add_u32 s3, s3, s66
s_add_u32 s7, s6, 28
s_and_b32 s7, s7, 31
s_add_u32 s7, s7, 32
s_lshl_b32 s67, s5, 6
s_add_u32 s7, s7, s67
v_mov_b32 v5, s3
v_mov_b32 v6, s7
v_cmp_gt_u32 vcc, 32, v0
v_cndmask_b32 v5, v6, v5, vcc
v_lshlrev_b32 v5, 10, v5
v_lshrrev_b32 v6, 1, v4
v_lshl_add_u32 v5, v6, 5, v5
v_lshl_add_u32 v5, v{tmp+1}, 4, v5
v_and_b32 v6, 1, v0
v_lshl_add_u32 v5, v6, 3, v5
s_lshl_b32 s3, s4, 8
s_add_u32 s3, s3, {ES}
v_add_u32 v{vPS}, s3, v5
s_lshl_b32 s3, s5, 16
s_lshl_b32 s7, s6, 5
s_add_u32 s3, s3, s7
s_add_u32 s3, s3, {ES}
v_lshrrev_b32 v5, 1, v0
v_lshlrev_b32 v5, 10, v5
v_lshl_add_u32 v5, v6, 4, v5
v_add_u32 v{vGS}, s3, v5
s_lshl_b32 s3, s5, 7
s_lshl_b32 s7, s6, 2
s_add_u32 s3, s3, s7
v_lshlrev_b32 v5, 10, v6
v_lshl_add_u32 v5, v{tmp+1}, 1, v5
v_add_u32 v{vOUT}, s3, v5
''')
    F = v('F', 16, 4); D = v('Dd', 16, 4)
    a('s_waitcnt vmcnt(8)')
    T(2)
    for i in range(8):
        a(f'v_lshlrev_b32 v{F+2*i}, 16, v{X+i}\nv_and_b32 v{F+2*i+1}, 0xffff0000, v{X+i}')
    def reduce2(s0, s1, t2):
        a(f'''v_permlane32_swap_b32 v{s0}, v{s1}
v_add_f32 v{s0}, v{s0}, v{s1}
v_mov_b32 v{t2}, v{s0}
v_permlane16_swap_b32 v{s0}, v{t2}
v_add_f32 v{s0}, v{s0}, v{t2}''')
        for r in (8, 4, 2, 1):
            a(f'v_add_f32_dpp v{s0}, v{s0}, v{s0} row_ror:{r} row_mask:0xf bank_mask:0xf')
    for b in range(2):
        f = F+8*b
        a(f'''v_add_f32 v{tmp+b}, v{f}, v{f+1}
v_add_f32 v{tmp+2}, v{f+2}, v{f+3}
v_add_f32 v{tmp+3}, v{f+4}, v{f+5}
v_add_f32 v{tmp+4}, v{f+6}, v{f+7}
v_add_f32 v{tmp+b}, v{tmp+b}, v{tmp+2}
v_add_f32 v{tmp+3}, v{tmp+3}, v{tmp+4}
v_add_f32 v{tmp+b}, v{tmp+b}, v{tmp+3}''')
    reduce2(tmp, tmp+1, tmp+2)
    a(f'''v_mul_f32 v{tmp}, 0x3b000000, v{tmp}
v_cvt_pk_bf16_f32 v{tmp+5}, v{tmp}, v{tmp}
v_lshlrev_b32 v{tmp+5}, 16, v{tmp+5}
v_readlane_b32 s32, v{tmp}, 0
v_readlane_b32 s33, v{tmp}, 32
v_readlane_b32 s34, v{tmp+5}, 0
v_readlane_b32 s35, v{tmp+5}, 32''')
    for i in range(16): a(f'v_subrev_f32 v{D+i}, s{32+i//8}, v{F+i}')
    for b in range(2):
        d = D+8*b
        a(f'v_mul_f32 v{tmp+b}, v{d}, v{d}\nv_mul_f32 v{tmp+2+b}, v{d+1}, v{d+1}')
        for i in range(2, 8, 2):
            a(f'v_fmac_f32 v{tmp+b}, v{d+i}, v{d+i}\nv_fmac_f32 v{tmp+2+b}, v{d+i+1}, v{d+i+1}')
        a(f'v_add_f32 v{tmp+b}, v{tmp+b}, v{tmp+2+b}')
    reduce2(tmp, tmp+1, tmp+2)
    a(f'''v_mul_f32 v{tmp}, 0x3b000000, v{tmp}
v_cvt_pk_bf16_f32 v{tmp}, v{tmp}, v{tmp}
v_lshlrev_b32 v{tmp}, 16, v{tmp}
v_add_f32 v{tmp}, 0x3727c5ac, v{tmp}
v_cvt_pk_bf16_f32 v{tmp}, v{tmp}, v{tmp}
v_lshlrev_b32 v{tmp}, 16, v{tmp}
v_sqrt_f32 v{tmp}, v{tmp}
v_cvt_pk_bf16_f32 v{tmp}, v{tmp}, v{tmp}
v_lshlrev_b32 v{tmp}, 16, v{tmp}
v_rcp_f32 v{tmp}, v{tmp}
v_readlane_b32 s32, v{tmp}, 0
v_readlane_b32 s33, v{tmp}, 32''')
    for i in range(16): a(f'v_subrev_f32 v{D+i}, s{34+i//8}, v{F+i}')
    for i in range(8): a(f'v_cvt_pk_bf16_f32 v{X+i}, v{D+2*i}, v{D+2*i+1}')
    for i in range(8): a(f'v_lshlrev_b32 v{D+2*i}, 16, v{X+i}\nv_and_b32 v{D+2*i+1}, 0xffff0000, v{X+i}')
    for i in range(16): a(f'v_mul_f32 v{D+i}, s{32+i//8}, v{D+i}')
    for i in range(8): a(f'v_cvt_pk_bf16_f32 v{X+i}, v{D+2*i}, v{D+2*i+1}')
    BA = v('BA', 64, 4); BB = v('BB', 64, 4); ACC = v('ACC', 8, 4)
    a(f'''v_lshlrev_b32 v1, 4, v0
v_add_u32 v1, {XN}, v1
ds_write_b128 v1, {vr(X,4)}
ds_write_b128 v1, {vr(X+4,4)} offset:1024''')
    for ks in range(8): a(f'ds_read2_b64 {vr(BA+4*ks,4)}, v{vAX} offset0:{8*ks} offset1:{8*ks+4}')
    a(f'''v_mov_b32 v{ACC}, 0
v_mov_b32 v{ACC+1}, 0
v_mov_b32 v{ACC+2}, 0
v_mov_b32 v{ACC+3}, 0
s_waitcnt vmcnt(0) lgkmcnt(0)
s_add_u32 s60, s60, {TAGINC}''')
    T(3)
    setflag(F_S1); spin(vFL, F_S1-FL, tmp)
    for ks in range(8):
        a(f'ds_read_b64_tr_b16 {vr(BB+4*ks,2)}, v{vTR} offset:{4096*ks}\nds_read_b64_tr_b16 {vr(BB+4*ks+2,2)}, v{vTR} offset:{4096*ks+2048}')
    for ks in range(8):
        a(f's_waitcnt lgkmcnt({14-2*ks})')
        a(f'v_mfma_f32_16x16x32_bf16 {vr(ACC,4)}, {vr(BA+4*ks,4)}, {vr(BB+4*ks,4)}, {vr(ACC,4)}')
    setflag(F_W1)
    a(f'''v_mov_b32 v{ACC+1}, s60
s_mov_b32 exec_hi, 0
buffer_store_dwordx2 {vr(ACC,2)}, v{vP1}, s[44:47], 0 offen {st}
s_mov_b64 exec, -1''')
    T(4)
    if qsleep: a(f's_sleep {qsleep}')
    G = F
    def poll(loads, tagregs, name):
        a(f'L_{name}:')
        for l in loads: a(l)
        a('s_waitcnt vmcnt(0)')
        a(f'v_cmp_ne_u32 vcc, s60, v{tagregs[0]}')
        for t in tagregs[1:]:
            a(f'v_cmp_ne_u32 s[32:33], s60, v{t}\ns_or_b64 vcc, vcc, s[32:33]')
        a(f'''s_cbranch_scc0 L_{name}_d
s_sub_u32 s68, s68, 1
s_cbranch_scc0 L_{name}
s_mov_b32 s68, 0
L_{name}_d:''')
    a('s_movk_i32 s34, 0x1000')
    poll([f'buffer_load_dwordx4 {vr(G,4)}, v{vGQ}, s[44:47], 0 offen sc1', f'buffer_load_dwordx4 {vr(G+4,4)}, v{vGQ}, s[44:47], s34 offen sc1'], [G+1, G+3, G+5, G+7], 'pq')
    T(5)
    HG = v('HG', 4, 4)
    a(f'''buffer_load_dwordx4 {vr(HG,4)}, v{vGH}, s[44:47], 0 offen sc1
v_add_f32 v{G}, v{G}, v{G+4}
v_add_f32 v{G+2}, v{G+2}, v{G+6}
v_cvt_pk_bf16_f32 v{G}, v{G}, v{G+2}
ds_write_b32 v{vQW}, v{G}
s_waitcnt lgkmcnt(0)''')
    setflag(F_S2); spin(vFL, F_S2-FL, tmp)
    for t in range(4):
        for ks in range(4): a(f'ds_read_b128 {vr(BB+16*t+4*ks,4)}, v{vQB+t} offset:{64*ks}')
    a(f'''v_mov_b32 v{ACC}, 0
v_mov_b32 v{ACC+1}, 0
v_mov_b32 v{ACC+2}, 0
v_mov_b32 v{ACC+3}, 0''')
    spin(vFL, F_K-FL, tmp)
    T(6)
    for t in range(4):
        for ks in range(4): a(f'ds_read_b128 {vr(BA+16*t+4*ks,4)}, v{vKA+ks} offset:{4096*t}')
    for i in range(16):
        a(f's_waitcnt lgkmcnt({min(15-i,15)})')
        a(f'v_mfma_f32_16x16x32_bf16 {vr(ACC,4)}, {vr(BA+4*i,4)}, {vr(BB+4*i,4)}, {vr(ACC,4)}')
    S = v('S', 4, 4); M = v('M'); L_ = v('L')
    def rne4(src, dst, t):
        a(f'''v_cvt_pk_bf16_f32 v{t}, v{src}, v{src+1}
v_cvt_pk_bf16_f32 v{t+1}, v{src+2}, v{src+3}
v_lshlrev_b32 v{dst}, 16, v{t}
v_and_b32 v{dst+1}, 0xffff0000, v{t}
v_lshlrev_b32 v{dst+2}, 16, v{t+1}
v_and_b32 v{dst+3}, 0xffff0000, v{t+1}''')
    rne4(ACC, S, tmp)
    for i in range(4): a(f'v_mul_f32 v{S+i}, 0x3db504f3, v{S+i}')
    rne4(S, S, tmp)
    def xl(op, r, t):
        a(f'''{op}_dpp v{r}, v{r}, v{r} row_ror:4 row_mask:0xf bank_mask:0xf
{op}_dpp v{r}, v{r}, v{r} row_ror:8 row_mask:0xf bank_mask:0xf
v_mov_b32 v{t}, v{r}
v_permlane16_swap_b32 v{r}, v{t}
{op} v{r}, v{r}, v{t}
v_mov_b32 v{t}, v{r}
v_permlane32_swap_b32 v{r}, v{t}
{op} v{r}, v{r}, v{t}''')
    a(f'v_max3_f32 v{M}, v{S}, v{S+1}, v{S+2}\nv_max_f32 v{M}, v{M}, v{S+3}')
    xl('v_max_f32', M, tmp)
    a(f'''s_lshl_b32 s3, s4, 4
v_add_u32 v{tmp}, s3, v{vMX}
ds_write_b32 v{tmp}, v{M}
s_waitcnt lgkmcnt(0)''')
    setflag(F_S3); spin(vFL, F_S3-FL, tmp)
    a(f'''ds_read2_b32 {vr(tmp,2)}, v{vMX} offset0:0 offset1:4
ds_read2_b32 {vr(tmp+2,2)}, v{vMX} offset0:8 offset1:12
s_waitcnt lgkmcnt(0)
v_max3_f32 v{M}, v{tmp}, v{tmp+1}, v{tmp+2}
v_max_f32 v{M}, v{M}, v{tmp+3}''')
    for i in range(4): a(f'v_sub_f32 v{S+i}, v{S+i}, v{M}')
    for i in range(4): a(f'v_mul_f32 v{S+i}, 0x3fb8aa3b, v{S+i}')
    for i in range(4): a(f'v_exp_f32 v{S+i}, v{S+i}')
    a(f'''v_add_f32 v{L_}, v{S}, v{S+1}
v_add_f32 v{tmp}, v{S+2}, v{S+3}
v_cvt_pk_bf16_f32 v{tmp+2}, v{S}, v{S+1}
v_cvt_pk_bf16_f32 v{tmp+3}, v{S+2}, v{S+3}
v_add_f32 v{L_}, v{L_}, v{tmp}
ds_write_b64 v{vPW}, {vr(tmp+2,2)}''')
    xl('v_add_f32', L_, tmp)
    a(f'''v_add_u32 v{tmp}, s3, v{vMX}
ds_write_b32 v{tmp}, v{L_} offset:{LS-MX}
s_waitcnt lgkmcnt(0)''')
    setflag(F_S4)
    a(f'''L_ph:
s_waitcnt vmcnt(0)
v_cmp_ne_u32 vcc, s60, v{HG+1}
v_cmp_ne_u32 s[32:33], s60, v{HG+3}
s_or_b64 vcc, vcc, s[32:33]
s_cbranch_scc0 L_ph_d
buffer_load_dwordx4 {vr(HG,4)}, v{vGH}, s[44:47], 0 offen sc1
s_sub_u32 s68, s68, 1
s_cbranch_scc0 L_ph
s_mov_b32 s68, 0
s_waitcnt vmcnt(0)
L_ph_d:
v_permlane16_swap_b32 v{HG}, v{HG+2}
v_add_f32 v{HG}, v{HG}, v{HG+2}
v_cvt_pk_bf16_f32 v{HG}, v{HG}, v{HG}
v_lshlrev_b32 v{HG}, 16, v{HG}
v_mov_b32 v{HG+1}, v{HG}
v_permlane32_swap_b32 v{HG}, v{HG+1}
v_mul_f32 v{HG+2}, 0xbfb8aa3b, v{HG}
v_exp_f32 v{HG+2}, v{HG+2}
v_add_f32 v{HG+2}, 1.0, v{HG+2}
v_rcp_f32 v{HG+2}, v{HG+2}
v_mul_f32 v{HG}, v{HG}, v{HG+2}
v_cvt_pk_bf16_f32 v{HG}, v{HG}, v{HG}
v_lshlrev_b32 v{HG}, 16, v{HG}
v_mul_f32 v{HG}, v{HG}, v{HG+1}
v_cvt_pk_bf16_f32 v{HG}, v{HG}, v{HG}
ds_write_b16 v{vHW}, v{HG}''')
    spin(vFL, F_S4-FL, tmp)
    OG = S; RL = v('RL')
    a(f'''ds_read2_b32 {vr(tmp,2)}, v{vMX} offset0:16 offset1:20
ds_read2_b32 {vr(tmp+2,2)}, v{vMX} offset0:24 offset1:28''')
    for u in range(2):
        for ks in range(8): a(f'ds_read2_b64 {vr(BB+32*u+4*ks,4)}, v{vPB+u} offset0:{8*ks} offset1:{8*ks+4}')
    a(f'''s_waitcnt lgkmcnt(0)
v_add_f32 v{tmp}, v{tmp}, v{tmp+1}
v_add_f32 v{tmp+2}, v{tmp+2}, v{tmp+3}
v_add_f32 v{tmp}, v{tmp}, v{tmp+2}
v_rcp_f32 v{RL}, v{tmp}
v_log_f32 v{tmp}, v{tmp}
v_mov_b32 v{tmp+1}, 0x3fb8aa3b
v_fma_f32 v{OG+2}, v{M}, v{tmp+1}, v{tmp}
v_mov_b32 v{OG+3}, s60
v_mov_b32 v{ACC}, 0
v_mov_b32 v{ACC+1}, 0
v_mov_b32 v{ACC+2}, 0
v_mov_b32 v{ACC+3}, 0''')
    T(7)
    a('s_barrier')
    T(8)
    for ks in range(8):
        for u in range(2):
            r = BA+8*ks+4*u
            a(f'ds_read_b64_tr_b16 {vr(r,2)}, v{vTV+u} offset:{8192*ks}\nds_read_b64_tr_b16 {vr(r+2,2)}, v{vTV+u} offset:{8192*ks+4096}')
            i = 2*ks+u
            if i >= 4:
                k = i-4
                a(f's_waitcnt lgkmcnt(8)')
                a(f'v_mfma_f32_16x16x32_bf16 {vr(ACC,4)}, {vr(BA+4*k,4)}, {vr(BB+32*(k&1)+4*(k>>1),4)}, {vr(ACC,4)}')
    for k in range(12, 16):
        a(f's_waitcnt lgkmcnt({2*(15-k)})')
        a(f'v_mfma_f32_16x16x32_bf16 {vr(ACC,4)}, {vr(BA+4*k,4)}, {vr(BB+32*(k&1)+4*(k>>1),4)}, {vr(ACC,4)}')
    for i in range(4): a(f'v_mul_f32 v{ACC+i}, v{ACC+i}, v{RL}')
    a(f'''v_cvt_pk_bf16_f32 v{OG}, v{ACC}, v{ACC+1}
v_cvt_pk_bf16_f32 v{OG+1}, v{ACC+2}, v{ACC+3}
s_mov_b32 exec_lo, 0x00ff00ff
s_mov_b32 exec_hi, 0x00ff00ff
buffer_store_dwordx4 {vr(OG,4)}, v{vPO}, s[44:47], 0 offen {st}
s_mov_b64 exec, -1''')
    T(9)
    HA = X
    for ks in range(2): a(f'ds_read2_b64 {vr(HA+4*ks,4)}, v{vAH} offset0:{8*ks} offset1:{8*ks+4}')
    for i in range(8): a(f'v_mov_b32 v{ACC+i}, 0')
    poll([f'buffer_load_dwordx4 {vr(G+4*i,4)}, v{vGO}, s[44:47], 0 offen offset:{512*i} sc1' for i in range(4)], [G+3, G+7, G+11, G+15], 'po')
    T(10)
    W = HG; U = D; Aa = v('Aa', 6, 2)
    a(f'''v_max3_f32 v{M}, v{G+2}, v{G+6}, v{G+10}
v_max_f32 v{M}, v{M}, v{G+14}
v_mov_b32 v{tmp}, v{M}''')
    for i in range(4): a(f'v_lshlrev_b32 v{U+4*i}, 16, v{G+4*i}')
    a(f'v_permlane16_swap_b32 v{M}, v{tmp}\nv_max_f32 v{M}, v{M}, v{tmp}\nv_mov_b32 v{tmp}, v{M}')
    for i in range(4): a(f'v_and_b32 v{U+4*i+1}, 0xffff0000, v{G+4*i}')
    a(f'v_permlane32_swap_b32 v{M}, v{tmp}\nv_max_f32 v{M}, v{M}, v{tmp}')
    for i in range(4): a(f'v_sub_f32 v{W+i}, v{G+4*i+2}, v{M}')
    for i in range(4): a(f'v_exp_f32 v{W+i}, v{W+i}\nv_lshlrev_b32 v{U+4*i+2}, 16, v{G+4*i+1}\nv_and_b32 v{U+4*i+3}, 0xffff0000, v{G+4*i+1}')
    for e in range(4): a(f'v_mul_f32 v{Aa+e}, v{W}, v{U+e}')
    a(f'v_add_f32 v{Aa+4}, v{W}, v{W+1}\nv_add_f32 v{Aa+5}, v{W+2}, v{W+3}')
    for i in range(1, 4):
        for e in range(4): a(f'v_fmac_f32 v{Aa+e}, v{W+i}, v{U+4*i+e}')
        if i == 1: a(f'v_add_f32 v{Aa+4}, v{Aa+4}, v{Aa+5}\nv_mov_b32 v{Aa+5}, v{Aa+4}')
    a(f'''v_permlane32_swap_b32 v{Aa+4}, v{Aa+5}
v_permlane32_swap_b32 v{Aa}, v{Aa+1}
v_permlane32_swap_b32 v{Aa+2}, v{Aa+3}
v_add_f32 v{Aa+4}, v{Aa+4}, v{Aa+5}
v_add_f32 v{Aa}, v{Aa}, v{Aa+1}
v_add_f32 v{Aa+2}, v{Aa+2}, v{Aa+3}
v_mov_b32 v{Aa+5}, v{Aa+4}
v_permlane16_swap_b32 v{Aa}, v{Aa+2}
v_permlane16_swap_b32 v{Aa+4}, v{Aa+5}
v_add_f32 v{Aa+4}, v{Aa+4}, v{Aa+5}
v_add_f32 v{Aa}, v{Aa}, v{Aa+2}
v_rcp_f32 v{Aa+4}, v{Aa+4}
v_mul_f32 v{Aa}, v{Aa}, v{Aa+4}
v_cvt_pk_bf16_f32 v{Aa}, v{Aa}, v{Aa}
ds_write_b16 v{vOW}, v{Aa}
s_waitcnt lgkmcnt(0)
s_barrier''')
    T(11)
    for ks in range(2):
        a(f'ds_read_b64_tr_b16 {vr(BB+16+4*ks,2)}, v{vTR} offset:{LWD-LW1+4096*ks}\nds_read_b64_tr_b16 {vr(BB+16+4*ks+2,2)}, v{vTR} offset:{LWD-LW1+4096*ks+2048}')
    for ks in range(4):
        a(f'ds_read2_b64 {vr(BA+4*ks,4)}, v{vAO} offset0:{8*ks} offset1:{8*ks+4}')
        a(f'ds_read_b64_tr_b16 {vr(BB+4*ks,2)}, v{vTR} offset:{LWO-LW1+4096*ks}\nds_read_b64_tr_b16 {vr(BB+4*ks+2,2)}, v{vTR} offset:{LWO-LW1+4096*ks+2048}')
        if ks == 2:
            a('s_waitcnt lgkmcnt(9)')
            for k2 in range(2): a(f'v_mfma_f32_16x16x32_bf16 {vr(ACC+4,4)}, {vr(HA+4*k2,4)}, {vr(BB+16+4*k2,4)}, {vr(ACC+4,4)}')
    for ks in range(4):
        a(f's_waitcnt lgkmcnt({9-3*ks})')
        a(f'v_mfma_f32_16x16x32_bf16 {vr(ACC,4)}, {vr(BA+4*ks,4)}, {vr(BB+4*ks,4)}, {vr(ACC,4)}')
    a(f'''v_cmp_gt_u32 vcc, 32, v0
v_mov_b32 v{tmp+1}, s60
v_cndmask_b32 v{tmp}, v{ACC+4}, v{ACC}, vcc
buffer_store_dwordx2 {vr(tmp,2)}, v{vPS}, s[44:47], 0 offen {st}''')
    T(12)
    a('s_cmp_lg_u32 s4, 0\ns_cbranch_scc1 L_cend\ns_mov_b32 s34, 0x8000')
    XV = v('XV')
    a(f'''v_and_b32 v1, 1, v0
v_cmp_eq_u32 vcc, 1, v1
v_mov_b32 v2, s64
v_mov_b32 v3, s65
v_cndmask_b32 v2, v2, v3, vcc
v_bfe_u32 v1, v0, 4, 1
v_cmp_eq_u32 vcc, 1, v1
v_lshlrev_b32 v3, 16, v2
v_and_b32 v2, 0xffff0000, v2
v_cndmask_b32 v{XV}, v3, v2, vcc''')
    poll([f'buffer_load_dwordx4 {vr(G,4)}, v{vGS}, s[44:47], 0 offen sc1', f'buffer_load_dwordx4 {vr(G+4,4)}, v{vGS}, s[44:47], s34 offen sc1'], [G+1, G+3, G+5, G+7], 'ps')
    a(f'''v_permlane32_swap_b32 v{G}, v{G+4}
v_permlane32_swap_b32 v{G+2}, v{G+6}
v_add_f32 v{G}, v{G}, v{G+4}
v_add_f32 v{G+2}, v{G+2}, v{G+6}
v_permlane16_swap_b32 v{G}, v{G+2}
v_add_f32 v{G}, v{G}, v{G+2}''')
    for r in (8, 4, 2): a(f'v_add_f32_dpp v{G}, v{G}, v{G} row_ror:{r} row_mask:0xf bank_mask:0xf')
    a(f'''v_cvt_pk_bf16_f32 v{G}, v{G}, v{G}
v_lshlrev_b32 v{G}, 16, v{G}
v_mov_b32 v{G+1}, v{G}
v_permlane32_swap_b32 v{G}, v{G+1}
v_mul_f32 v{G+2}, 0xbfb8aa3b, v{G+1}
v_exp_f32 v{G+2}, v{G+2}
v_add_f32 v{G+2}, 1.0, v{G+2}
v_rcp_f32 v{G+2}, v{G+2}
v_mul_f32 v{G+1}, v{G+1}, v{G+2}
v_cvt_pk_bf16_f32 v{G+1}, v{G+1}, v{G+1}
v_lshlrev_b32 v{G+1}, 16, v{G+1}
v_mul_f32 v{G}, v{G}, v{G+1}
v_cvt_pk_bf16_f32 v{G}, v{G}, v{G}
v_lshlrev_b32 v{G}, 16, v{G}
v_add_f32 v{G}, v{G}, v{XV}
v_cvt_pk_bf16_f32 v{G}, v{G}, v{G}
s_mov_b32 exec_lo, 0x30003
s_mov_b32 exec_hi, 0
buffer_store_short v{G}, v{vOUT}, s[48:51], 0 offen {outst}
s_cmp_lg_u32 s2, 0
s_cbranch_scc1 L_cend
s_mov_b64 exec, 1
v_mov_b32 v1, {EPOCH}
v_mov_b32 v2, s60
buffer_store_dword v2, v1, s[44:47], 0 offen {st}
L_cend:''')
    T(13)
    a('s_branch L_fin')
    nv_c = v.n
    a(f'''L_loader:
s_sub_u32 s7, s4, 4               ; lw
s_lshr_b32 s3, s6, 4
s_lshl_b32 s32, s3, 26
s_lshl_b32 s33, s5, 23
s_add_u32 s32, s32, s33
s_and_b32 s33, s6, 15
s_lshl_b32 s33, s33, 16
s_add_u32 s32, s32, s33
s_add_u32 s32, s32, {28672*256}
s_add_u32 s36, s10, s32
s_addc_u32 s37, s11, 0
s_mov_b32 s38, 0x10000
s_mov_b32 s39, 0x20000
s_add_u32 s40, s12, s32
s_addc_u32 s41, s13, 0
s_mov_b32 s42, 0x10000
s_mov_b32 s43, 0x20000
v_lshrrev_b32 v1, 4, v0
v_and_b32 v2, 15, v0
s_lshl_b32 s3, s7, 2
v_add_u32 v3, s3, v1
v_xor_b32 v4, v3, v2
v_lshlrev_b32 v4, 4, v4
v_lshl_add_u32 v8, v1, 8, v4      ; K voffset
v_and_b32 v3, 7, v3
v_lshlrev_b32 v3, 1, v3
v_xor_b32 v4, v3, v2
v_lshlrev_b32 v4, 4, v4
v_lshl_add_u32 v9, v1, 8, v4      ; V voffset
''')
    if rot == 'hj': a('s_add_u32 s34, s5, s6\ns_lshl_b32 s34, s34, 12')
    elif rot == 'h': a('s_lshl_b32 s34, s5, 12')
    elif rot == 'j': a('s_lshl_b32 s34, s6, 12')
    else: a('s_mov_b32 s34, 0')
    a(f's_lshl_b32 s35, s7, 10\ns_add_u32 s34, s34, s35\ns_mov_b32 s33, s34\ns_add_u32 m0, s35, {LK}')
    for i in range(16):
        a(f's_and_b32 s33, s33, 0xffff\nbuffer_load_dwordx4 v8, s[36:39], s33 offen nt lds\ns_add_u32 s33, s33, 4096\ns_add_u32 m0, m0, 4096')
    a(f'''s_lshr_b32 s3, s6, 3
s_lshl_b32 s32, s5, 2
s_add_u32 s3, s3, s32
s_lshl_b32 s3, s3, 17
s_and_b32 s32, s6, 7
s_lshl_b32 s32, s32, 7
s_add_u32 s3, s3, s32
s_add_u32 s44, s16, s3
s_addc_u32 s45, s17, 0
s_mov_b32 s46, {127*1024+128}
s_mov_b32 s47, 0x20000
s_sub_u32 s3, s6, 4
s_cselect_b32 s3, 0, s3
s_cselect_b32 s50, 0, {63*1024+128}
s_lshl_b32 s3, s3, 16
s_lshl_b32 s32, s5, 7
s_add_u32 s3, s3, s32
s_add_u32 s48, s24, s3
s_addc_u32 s49, s25, 0
s_mov_b32 s51, 0x20000
v_lshrrev_b32 v2, 3, v0
v_lshlrev_b32 v3, 1, v1
v_and_b32 v4, 7, v0
v_xor_b32 v3, v3, v4
v_lshlrev_b32 v3, 4, v3
v_lshl_add_u32 v10, v2, 10, v3    ; W voffset
v_mov_b32 v11, {FL}
s_lshl_b32 s3, s7, 2
s_add_u32 s3, s3, {F_K}
v_mov_b32 v12, s3
v_mov_b32 v13, 1
s_mov_b32 s33, s34''')
    for i in range(16):
        if i == 8: spin(11, F_W1-FL, 16)
        a(f's_and_b32 s33, s33, 0xffff\nbuffer_load_dwordx4 v9, s[40:43], s33 offen nt lds\ns_add_u32 s33, s33, 4096\ns_add_u32 m0, m0, 4096')
        if i == kwait:
            a(f's_waitcnt vmcnt({i+1})\nds_write_b32 v12, v13')
            T(6)
    a('s_lshl_b32 s33, s7, 13')
    for i in range(4):
        a(f'buffer_load_dwordx4 v10, s[44:47], s33 offen nt lds\ns_add_u32 s33, s33, 32768\ns_add_u32 m0, m0, 4096')
    a('s_lshl_b32 s33, s7, 13')
    for i in range(2):
        a(f'buffer_load_dwordx4 v10, s[48:51], s33 offen nt lds\ns_add_u32 s33, s33, 32768\ns_add_u32 m0, m0, 4096')
    T(7)
    a('s_waitcnt vmcnt(6)')
    T(2)
    a('s_barrier')
    T(8)
    a('s_waitcnt vmcnt(0)')
    T(3)
    a('s_barrier')
    T(11)
    if diag:
        for i in (4, 5, 9, 10, 12, 13): T(i)
    a('L_fin:')
    if diag == 'ws': a(ts_store(14, 30, 4, srd=36))
    if diag == 'dbg':
        a(f'''s_cmp_ge_u32 s2, 8
s_cbranch_scc1 L_end
s_cmp_lg_u32 s4, 0
s_cbranch_scc1 L_end
s_waitcnt lgkmcnt(0)
s_mov_b32 s36, s28
s_mov_b32 s37, s29
s_mov_b32 s38, 256
s_mov_b32 s39, 0x20000
s_lshl_b32 s3, s2, 3
s_mov_b64 exec, 1
v_mov_b32 v1, s3
v_mov_b32 v2, s{TSB}
v_mov_b32 v3, s{TSB+26}
buffer_store_dwordx2 v[2:3], v1, s[36:39], 0 offen''')
    a('L_end:\ns_endpgm')
    a(kdesc(KN+'_kernel', max(nv_c, 24)))
    return hdr_ref + pad(a.text())

if __name__ == '__main__':
    open('k1_ws.s', 'w').write(gen('ws'))
    open('k1.s', 'w').write(gen(None))
    open('k1_dbg.s', 'w').write(gen('dbg'))
```

```python
import sys
from asmlib import *
from hz import pad

EPOCH=0; EX=0x2000; EH=0x4000; EQ=0x10000; EF=0x30000; DUMMY=0x4C000; EO=0x80000; ES=0x100000; WSZ=0x180000
LK=0; LV=65536; LW1=98304; LWO=131072; LWD=147456; MB=155648
XS=1088; QS=320; PS_=576; OS=320
XN=MB; LQ=MB+2304; LP=MB+3584; FL=MB+6144; LO=MB+6400; LH=MB+7168; MX=MB+7424; LS=MB+7488
F_W1F, F_S2, F_S3, F_S4, F_G, F_LD, F_MODE = [FL+16*i for i in range(7)]
LDS_TOTAL=163840
TAGINC=0x9E3779B9
BUD=1000000

class V:
    def __init__(self, start=1): self.n = start; self.m = {}
    def __call__(self, name, cnt=1, align=1):
        if name in self.m: return self.m[name]
        self.n = (self.n + align-1)//align*align
        self.m[name] = self.n; self.n += cnt
        return self.m[name]
def vr(a, n): return f'v[{a}:{a+n-1}]'
NAMES = 'start,karg,x,w1,pub1,q,kready,sm,b1,pubo,ogot,b2,pubs,fin,#c1,#c2'.split(',')

def gen(diag=None, keep=None, NF=20, NFE=22, gE=8, wt=4, kf=1, vs=6, b2a=True, wb=None, g0=None, lp={'po_st':'sc0','pfs':'sc0','p1':'sc0'}, qsleep=2, early='', cprio=2, lprio=0, osleep=1, fsleep=19, xsleep=4, spin_sleep=1,
        pre='', vsplit=True, forceglobal=False, pol='nt', amp=None, cpf=False, pads=False, tlb=False, skip=(), p1pol='sc1', expol='', wide=None, xtries=8):
    if amp: diag = 'amp'; keep = [amp[0], amp[1]]
    a = A()
    hdr_ref = open('cdna_kernels/%s.s.ref' % KN).read().split('; Override')[0]
    extra = f'; ts nwg=256 nwave=5 names={",".join(NAMES)}' if diag == 'ws' else ''
    a(header(f'; @launch grid=(256,1,1) block=(384,1,1) lds={LDS_TOTAL}', extra))
    a(kstart(KN+'_kernel'))
    def T(i):
        if not diag: return
        if keep is None or NAMES[i] in keep or i == 0: a(ts(i))
        else: a(f's_mov_b32 s{TSB+2*i}, 0')
    def C(i):
        if diag and diag != 'amp': a(f's_sub_u32 s{TSB+2*i}, {BUD}, s68\ns_mov_b32 s68, {BUD}')
    def RB():
        if diag and diag != 'amp': a(f's_mov_b32 s68, {BUD}')
    lab = [0]; padn = [0]
    def spin(flag_v, off, tmp, n=4):
        lab[0] += 1; L = f'L_sp{lab[0]}'
        if n == 4:
            rd = f'''ds_read_b128 {vr(tmp,4)}, v{flag_v} offset:{off}
s_waitcnt lgkmcnt(0)
v_and_b32 v{tmp}, v{tmp}, v{tmp+1}
v_and_b32 v{tmp+2}, v{tmp+2}, v{tmp+3}
v_and_b32 v{tmp}, v{tmp}, v{tmp+2}'''
        else:
            rd = f'ds_read_b32 v{tmp}, v{flag_v} offset:{off}\ns_waitcnt lgkmcnt(0)'
        a(f'''{L}:
{rd}
v_cmp_ne_u32 vcc, 0, v{tmp}
s_cbranch_vccnz {L}_d
s_sleep {spin_sleep}
s_sub_u32 s68, s68, 1
s_cbranch_scc0 {L}
s_mov_b32 s68, 0
{L}_d:''')
    def PAD():
        if pads:
            a(f'L_pad{padn[0]}:\ns_cbranch_execz L_pad{padn[0]+1}'); padn[0] += 1
    def ppoll(items, srd, name, issued=False, tp=None, first=0, lo=False):
        def ld(it): return f'buffer_load_dwordx4 {vr(it[0],4)}, v{it[1]}, s[{srd}:{srd+3}], {it[2]} offen offset:{it[3]} sc1'
        if not issued:
            for it in items: a(ld(it))
        if first: a(f's_waitcnt vmcnt({first})\ns_branch L_{name}_c')
        a(f'L_{name}:\ns_waitcnt vmcnt(0)\nL_{name}_c:')
        for i, it in enumerate(items):
            m = 8+2*i; d = it[0]
            if it[4] == 'P':
                a(f'v_perm_b32 v{tp}, v{d+1}, v{d}, s24\nv_perm_b32 v{tp+1}, v{d+3}, v{d+2}, s25\nv_or_b32 v{tp}, v{tp}, v{tp+1}\nv_cmp_ne_u32 s[{m}:{m+1}], s60, v{tp}')
            else:
                a(f'v_cmp_ne_u32 s[{m}:{m+1}], s60, v{d+it[4][0]}')
                for t in it[4][1:]: a(f'v_cmp_ne_u32 s[{16+2*i}:{17+2*i}], s60, v{d+t}')
        for i, it in enumerate(items):
            if it[4] != 'P' and len(it[4]) > 1: a(f's_or_b64 s[{8+2*i}:{9+2*i}], s[{8+2*i}:{9+2*i}], s[{16+2*i}:{17+2*i}]')
        if len(items) == 4: a('s_or_b64 s[16:17], s[8:9], s[10:11]\ns_or_b64 s[18:19], s[12:13], s[14:15]\ns_or_b64 s[16:17], s[16:17], s[18:19]')
        elif len(items) == 2: a('s_or_b64 s[16:17], s[8:9], s[10:11]')
        elif items[0][4] == 'P' or len(items[0][4]) == 1: a('s_or_b64 s[8:9], s[8:9], s[8:9]')
        a(f's_cbranch_scc0 L_{name}_d')
        for i, it in enumerate(items):
            a(f's_mov_b64 exec, s[{8+2*i}:{9+2*i}]\ns_cbranch_execz L_{name}_s{i}\n{ld(it)}\nL_{name}_s{i}:')
        a(f'''{'s_mov_b32 exec_lo, -1' if lo else 's_mov_b64 exec, -1'}
s_sub_u32 s68, s68, 1
s_cbranch_scc0 L_{name}
s_mov_b32 s68, 0
s_waitcnt vmcnt(0)
L_{name}_d:''')
    def st2(text, name, gp='sc1'):
        a(f's_cbranch_scc1 L_{name}_l\n{text} {gp}\ns_branch L_{name}_e\nL_{name}_l:\n{text} {lp.get(name, str())}\nL_{name}_e:')

    T(0)
    if amp and amp[2] == 'clk': a('s_memtime s[100:101]')
    a(f'''s_load_dwordx16 s[8:23], s[0:1], 0
s_load_dwordx8 s[24:31], s[0:1], 64
v_lshrrev_b32 v1, 6, v0
s_lshr_b32 s6, s2, 3              ; j
v_readfirstlane_b32 s4, v1        ; wave
s_cmp_ge_u32 s6, 32
s_cbranch_scc1 L_end0
v_and_b32 v0, 63, v0
s_and_b32 s5, s2, 7               ; h
s_cmp_lg_u32 s4, 0
s_cbranch_scc1 L_disp
v_lshrrev_b32 v1, 4, v0
v_and_b32 v5, 15, v0
v_lshlrev_b32 v6, 8, v1
v_xor_b32 v7, v1, v5
v_lshl_add_u32 v12, v7, 4, v6
s_movk_i32 s3, 0x80
v_xor_b32 v13, 64, v12
v_xor_b32 v14, s3, v12
v_xor_b32 v15, s3, v13
s_lshr_b32 s3, s6, 4
s_lshl_b32 s34, s3, 26
s_lshl_b32 s3, s5, 3
s_or_b32 s3, s3, 7
s_lshl_b32 s3, s3, 20
s_add_u32 s34, s34, s3
s_and_b32 s3, s6, 15
s_lshl_b32 s3, s3, 16
s_add_u32 s34, s34, s3
s_lshl_b32 s38, 1, 16
s_mov_b32 s39, 0x20000
s_add_u32 s57, s5, s6
s_and_b32 s57, s57, 15
s_lshl_b32 s57, s57, 12
s_movk_i32 s61, 0x1000
s_mov_b32 m0, {LK}
s_mov_b32 s35, {kf-1}
s_waitcnt lgkmcnt(0)
s_add_u32 s36, s10, s34
s_addc_u32 s37, s11, 0''')
    if diag and keep and 'pub1' in keep: T(4)
    a('L_k0:')
    for k in range(4): a(f'buffer_load_dwordx4 v{12+k}, s[36:39], s57 offen offset:{1024*k} {pol} lds')
    a(f'''s_add_u32 s57, s57, s61
s_bitset0_b32 s57, 16
s_add_u32 m0, m0, s61
s_sub_u32 s35, s35, 1
s_cbranch_scc0 L_k0
s_branch L_loader2
L_end0:
s_endpgm
.p2align 8
L_disp:
s_cmp_eq_u32 s4, 5
s_cbranch_scc0 L_comp
s_mov_b32 s46, {WSZ}
s_mov_b32 s47, 0x20000''')
    if early:
        a(f'''s_lshl_b32 s3, s5, 7
s_add_u32 s3, s3, s6
s_lshl_b32 s3, s3, 9
s_add_u32 s3, s3, {EO}
v_lshrrev_b32 v1, 2, v0
v_lshlrev_b32 v1, 14, v1
v_and_b32 v2, 3, v0
v_lshl_add_u32 v1, v2, 7, v1
v_add_u32 v1, s3, v1
s_add_u32 s7, s6, 28
s_and_b32 s7, s7, 31
s_lshl_b32 s3, s5, 6
s_add_u32 s3, s3, s7
s_lshl_b32 s3, s3, 9
s_add_u32 s3, s3, {ES+16384}
v_lshlrev_b32 v2, 7, v2
v_add_u32 v2, s3, v2''')
    a(f's_waitcnt lgkmcnt(0)\ns_load_dword s60, s[30:31], {EPOCH}\ns_mov_b32 s44, s30\ns_mov_b32 s45, s31')
    if 'o' in early: a('s_mov_b32 exec_lo, 0xffff\ns_mov_b32 exec_hi, 0\nbuffer_load_dword v8, v1, s[44:47], 0 offen')
    if 'f' in early: a('s_mov_b64 exec, 15\nbuffer_load_dword v9, v2, s[44:47], 0 offen')
    if early: a('s_mov_b64 exec, -1')
    a('s_branch L_help\nL_loader2:')
    if lprio: a(f's_setprio {lprio}')
    T(1)
    a(f'''s_mov_b32 m0, {LP}
s_mov_b32 s64, s8
s_mov_b32 s65, s9
s_movk_i32 s66, 0x800
s_mov_b32 s67, 0x20000
v_lshlrev_b32 v7, 4, v0
buffer_load_dwordx4 v7, s[64:67], 0 offen lds
buffer_load_dwordx4 v7, s[64:67], 0 offen offset:1024 lds
v_mov_b32 v8, 0
v_lshlrev_b32 v9, 2, v0
v_add_u32 v9, {FL}, v9
ds_write_b32 v9, v8
v_lshlrev_b32 v7, 1, v1
v_xor_b32 v7, v7, v5
v_lshlrev_b32 v7, 4, v7
s_lshl_b32 s3, s5, 4
s_add_u32 s3, s3, s6
s_sub_u32 s3, s3, 16
s_lshr_b32 s58, s3, 3
s_bfe_u32 s7, s3, 0x20001
s_mulk_i32 s7, 1792
s_add_u32 s58, s58, s7
s_bitcmp0_b32 s3, 0
s_cselect_b32 s40, s20, s22
s_cselect_b32 s41, s21, s23
s_lshl_b32 s33, s5, 2
s_and_b32 s7, s6, 3
s_add_u32 s33, s33, s7
s_lshr_b32 s7, s6, 2
s_lshl_b32 s7, s7, 12
s_add_u32 s33, s33, s7
s_movk_i32 s56, 3584
s_cmp_lt_u32 s6, 16
s_cselect_b32 s58, s33, s58
s_cselect_b32 s56, 0x2000, s56
s_cselect_b32 s40, s14, s40
s_cselect_b32 s41, s15, s41
s_cselect_b32 s3, 0, s3
s_cmp_lt_u32 s3, 112
s_cselect_b32 s58, s58, 0
s_cselect_b32 s42, s56, 0
s_cselect_b32 s7, 1, 0
s_lshl_b32 s58, s58, 8
s_mulk_i32 s42, 127
s_lshl_b32 s7, s7, 8
s_add_u32 s42, s42, s7
s_add_u32 s40, s40, s58
s_addc_u32 s41, s41, 0
s_mov_b32 s43, 0x20000
s_lshl_b32 s32, s56, 2
s_sub_u32 s33, s32, 0x400         ; 4*stride-1024
s_lshl_b32 s32, s32, 2            ; 16*stride
v_mad_u32_u24 v8, v1, s56, v7
v_xor_b32 v10, 0x80, v8
v_add_u32 v9, s33, v8
v_add_u32 v10, s33, v10
v_add_u32 v10, s33, v10
v_add_u32 v11, s33, v10
s_mov_b32 m0, {LW1}
s_mov_b32 s33, 0''')
    Wc = [NF-1]
    def group(vo, srd, so='s33', waits=(1,1,1,1)):
        for k in range(4):
            if waits[k]: a(f's_waitcnt vmcnt({Wc[0]})')
            a(f'buffer_load_dwordx4 v{vo[k]}, s[{srd}:{srd+3}], {so} offen offset:{1024*k} {pol} lds')
    def loop(n, vo, srd, step, wrap=False):
        if n <= 0: return
        lab[0] += 1; L = f'L_ld{lab[0]}'
        a(f's_mov_b32 s35, {n-1}\n{L}:')
        group(vo, srd)
        a(f's_add_u32 s33, s33, {step}')
        if wrap: a('s_bitset0_b32 s33, 16')
        a(f's_add_u32 m0, m0, s61\ns_sub_u32 s35, s35, 1\ns_cbranch_scc0 {L}')
    def lflag(off): a(f's_mov_b64 exec, 1\nds_write_b32 v24, v25 offset:{off-FL}\ns_mov_b64 exec, -1')
    ga = NF//4
    g0 = g0 or max(1, ga - kf)
    for g in range(g0):
        group((8, 9, 10, 11), 40, waits=(0, 0, 0, 0)); a('s_add_u32 s33, s33, s32\ns_add_u32 m0, m0, s61')
    a(f'''s_waitcnt lgkmcnt(0)
s_barrier
s_add_u32 s44, s12, s34
s_addc_u32 s45, s13, 0
s_mov_b32 s46, 0x10000
s_mov_b32 s47, 0x20000
s_load_dword s60, s[30:31], {EPOCH}
s_and_b32 s3, s6, 1
s_lshl_b32 s3, s3, 3
s_add_u32 s3, s3, s5
s_lshl_b32 s3, s3, 4
s_lshr_b32 s7, s6, 1
s_add_u32 s3, s3, s7
s_lshl_b32 s3, s3, 3
s_load_dwordx2 s[62:63], s[8:9], s3
s_mov_b32 s68, {BUD}
s_mov_b32 s10, 0x0c0c0400
s_mov_b32 s11, 0x04000c0c
v_add_u32 v16, v6, v7
v_xor_b32 v17, 0x80, v16
v_and_b32 v7, 1, v1
v_lshlrev_b32 v6, 2, v7
v_add_u32 v26, s3, v6
s_lshl_b32 s3, s5, 15
s_lshl_b32 s7, s6, 4
s_add_u32 s3, s3, s7
s_add_u32 s3, s3, {ES}
v_and_b32 v6, 31, v0
v_lshlrev_b32 v6, 9, v6
v_add_u32 v27, s3, v6
v_lshrrev_b32 v2, 3, v0
v_and_b32 v4, 7, v0
v_lshlrev_b32 v3, 1, v7
v_xor_b32 v3, v3, v4
v_lshlrev_b32 v3, 4, v3
v_lshl_add_u32 v20, v2, 10, v3
v_xor_b32 v21, 64, v20
v_add_u32 v21, 7168, v21
v_add_u32 v22, 14336, v20
v_add_u32 v23, 14336, v21
v_mov_b32 v24, {FL}
v_mov_b32 v25, 1
s_lshr_b32 s3, s6, 3
s_lshl_b32 s7, s5, 2
s_add_u32 s3, s3, s7
s_lshl_b32 s3, s3, 17
s_and_b32 s7, s6, 7
s_lshl_b32 s7, s7, 7
s_add_u32 s3, s3, s7
s_add_u32 s48, s16, s3
s_addc_u32 s49, s17, 0
s_mov_b32 s50, {127*1024+128}
s_mov_b32 s51, 0x20000
s_sub_u32 s3, s6, 4
s_cselect_b32 s3, 0, s3
s_cselect_b32 s54, 0, {63*1024+128}
s_lshl_b32 s3, s3, 16
s_lshl_b32 s7, s5, 7
s_add_u32 s3, s3, s7
s_add_u32 s52, s24, s3
s_addc_u32 s53, s25, 0
s_mov_b32 s55, 0x20000''')
    W1v = (8, 9, 10, 11); Kv = (12, 13, 14, 15); Vv = (16, 16, 17, 17); W2v = (20, 21, 22, 23)
    loop(ga-g0, W1v, 40, 's32')
    a(f's_waitcnt vmcnt({4*ga})'); lflag(F_LD+12); T(5)
    loop(8-ga, W1v, 40, 's32')
    a(f's_mov_b32 s33, 0\ns_mov_b32 m0, {LWD}')
    loop(2, W2v, 52, '0x8000')
    a(f's_mov_b32 s33, s57\ns_mov_b32 m0, {LK+4096*kf}')
    loop(ga-2, Kv, 36, 's61', True)
    a(f's_waitcnt vmcnt({4*ga})'); lflag(F_LD); T(3)
    if wide:
        n, wn, allw = wide
        if not allw:
            a('s_cmp_lt_u32 s6, 16\ns_cbranch_scc0 L_wide')
            loop(n, Kv, 36, 's61', True)
            a('s_branch L_wide_e\nL_wide:')
        sv = Wc[0]; Wc[0] = wn-1
        loop(n, Kv, 36, 's61', True)
        Wc[0] = sv
        a('L_wide_e:')
        loop(16-kf-ga+2-n, Kv, 36, 's61', True)
    else: loop(16-kf-ga+2, Kv, 36, 's61', True)
    loop(ga, Vv, 44, 's61', True)
    a(f's_waitcnt vmcnt({4*ga})'); lflag(F_LD+4); T(6)
    loop(8-ga, Vv, 44, 's61', True)
    spin(24, F_W1F-FL, 28)
    if wt < 4:
        a(f's_mov_b32 s57, s33\ns_mov_b32 s33, 0\ns_mov_b32 m0, {LWO}')
        loop(4-wt, W2v, 48, '0x8000')
        a(f's_mov_b32 s33, s57\ns_mov_b32 m0, {LV+32768}')
    loop(gE-8, Vv, 44, 's61', True)
    Wc[0] = NFE-1
    loop(16-gE, Vv, 44, 's61', True)
    nW2 = 4*wt
    need = 64 - 8*vs
    done = [not vsplit]
    def vflag(cnt, last=False):
        if not done[0] and (cnt + need >= NFE or last):
            a(f's_waitcnt vmcnt({cnt+need})'); lflag(F_LD+8); done[0] = True
    vflag(0, wt == 0)
    a(f's_mov_b32 s33, {0x8000*(4-wt)}\ns_mov_b32 m0, {LWO+4096*(4-wt)}')
    cnt = 0
    for g in range(wt):
        group(W2v, 48, waits=[1 if cnt+k < NFE else 0 for k in range(4)]); cnt += 4
        vflag(cnt, g == wt-1)
        if g < wt-1: a('s_add_u32 s33, s33, 0x8000\ns_add_u32 m0, m0, s61')
    T(7)
    a(f's_waitcnt vmcnt({nW2})')
    T(2)
    a('s_barrier                          ; B1: V landed')
    T(8)
    G = 32
    a(f'''s_add_u32 s60, s60, {TAGINC}
s_mov_b32 s64, s30
s_mov_b32 s65, s31
s_mov_b32 s66, {WSZ}
s_mov_b32 s67, 0x20000
s_mov_b32 s34, 0x4000
s_mov_b32 s56, s26
s_mov_b32 s57, s27
s_movk_i32 s58, 0x800
s_mov_b32 s59, 0x20000
s_mov_b32 s24, s10
s_mov_b32 s25, s11
v_and_b32 v5, 1, v1
v_cmp_eq_u32 vcc, 1, v5
v_mov_b32 v2, s62
v_mov_b32 v3, s63
v_cndmask_b32 v2, v2, v3, vcc
v_lshlrev_b32 v28, 16, v2
v_and_b32 v29, 0xffff0000, v2
s_setprio 3
s_waitcnt vmcnt(0)''')
    T(10)
    if b2a: a('s_barrier')
    a('s_barrier')
    T(11)
    def red32(r):
        for k in range(4): a(f'v_and_b32 v{r+k}, 0xffffff00, v{r+k}')
        a(f'''v_permlane16_swap_b32 v{r}, v{r+2}
v_permlane16_swap_b32 v{r+1}, v{r+3}
v_pk_add_f32 {vr(r,2)}, {vr(r,2)}, {vr(r+2,2)}''')
        for k in (8, 4, 2, 1):
            for e in range(2): a(f'v_add_f32_dpp v{r+e}, v{r+e}, v{r+e} row_ror:{k} row_mask:0xf bank_mask:0xf')
        a(f'v_cvt_pk_bf16_f32 v{r+1}, v{r}, v{r+1}\nv_lshlrev_b32 v{r}, 16, v{r+1}\nv_and_b32 v{r+1}, 0xffff0000, v{r+1}')
    PAD()
    a(f's_mov_b32 exec_hi, 0\nbuffer_load_dwordx4 {vr(G+4,4)}, v27, s[64:67], s34 offen sc1')
    if fsleep: a(f's_sleep {fsleep}')
    a(f'buffer_load_dwordx4 {vr(G,4)}, v27, s[64:67], 0 offen sc1')
    ppoll([(G+4, 27, 's34', 0, 'P')], 64, 'pf', issued=True, first=1, tp=G+8, lo=True)
    red32(G+4)
    a(f'''v_mul_f32 v{G+6}, 0xbfb8aa3b, v{G+4}
v_mul_f32 v{G+7}, 0xbfb8aa3b, v{G+5}
v_exp_f32 v{G+6}, v{G+6}
v_exp_f32 v{G+7}, v{G+7}
v_add_f32 v{G+6}, 1.0, v{G+6}
v_add_f32 v{G+7}, 1.0, v{G+7}
v_rcp_f32 v{G+6}, v{G+6}
v_rcp_f32 v{G+7}, v{G+7}
v_pk_mul_f32 {vr(G+4,2)}, {vr(G+4,2)}, {vr(G+6,2)}
v_cvt_pk_bf16_f32 v{G+5}, v{G+4}, v{G+5}
v_lshlrev_b32 v{G+4}, 16, v{G+5}
v_and_b32 v{G+5}, 0xffff0000, v{G+5}''')
    PAD()
    RB()
    ppoll([(G, 27, '0', 0, 'P')], 64, 'ps', issued=True, tp=G+8, lo=True)
    red32(G)
    a(f'''v_pk_mul_f32 {vr(G,2)}, {vr(G,2)}, {vr(G+4,2)}
v_cvt_pk_bf16_f32 v{G+1}, v{G}, v{G+1}
v_lshlrev_b32 v{G}, 16, v{G+1}
v_and_b32 v{G+1}, 0xffff0000, v{G+1}
v_pk_add_f32 {vr(G,2)}, {vr(G,2)}, v[28:29]
s_mov_b32 exec_lo, 0x10001
v_cvt_pk_bf16_f32 v{G}, v{G}, v{G+1}
buffer_store_dword v{G}, v26, s[56:59], 0 offen''')
    PAD()
    a(f'''s_cmp_lg_u32 s2, 0
s_cbranch_scc1 L_lend
s_mov_b64 exec, 1
v_mov_b32 v1, {EPOCH}
v_mov_b32 v2, s60
buffer_store_dword v2, v1, s[64:67], 0 offen
L_lend:''')
    if diag:
        T(13); C(15)
        for i in ((9, 12) if keep and 'pub1' in keep else (4, 9, 12)): T(i)
        if diag != 'amp': a(f's_mov_b32 s{TSB+28}, 0')
        a('s_branch L_fin')
    else: a('s_endpgm')
    a(f'''L_help:
s_barrier
s_getreg_b32 s63, hwreg(HW_REG_XCC_ID)
s_lshl_b32 s3, s5, 8
s_lshl_b32 s7, s6, 3
s_add_u32 s3, s3, s7
s_add_u32 s3, s3, {EX}
v_mov_b32 v1, s3
s_and_b32 s63, s63, 15
v_mov_b32 v2, s63
s_mov_b64 exec, 1
s_waitcnt lgkmcnt(0)
s_add_u32 s60, s60, {TAGINC}
v_mov_b32 v3, s60
buffer_store_dwordx2 v[2:3], v1, s[44:47], 0 offen {expol}''')
    if tlb:
        a(f'''s_lshr_b32 s3, s6, 4
s_lshl_b32 s34, s3, 26
s_lshl_b32 s3, s5, 3
s_or_b32 s3, s3, 7
s_lshl_b32 s3, s3, 20
s_add_u32 s34, s34, s3
s_and_b32 s3, s6, 15
s_lshl_b32 s3, s3, 16
s_add_u32 s34, s34, s3
s_load_dword s35, s[12:13], s34
s_lshr_b32 s3, s6, 3
s_lshl_b32 s34, s5, 2
s_add_u32 s3, s3, s34
s_lshl_b32 s3, s3, 10
s_and_b32 s34, s6, 7
s_add_u32 s3, s3, s34
s_lshl_b32 s3, s3, 7
s_load_dword s35, s[16:17], s3
s_sub_u32 s3, s6, 4
s_cselect_b32 s3, 0, s3
s_lshl_b32 s3, s3, 9
s_add_u32 s3, s3, s5
s_lshl_b32 s3, s3, 7
s_load_dword s35, s[24:25], s3''')
    if 'e' in pre:
        a(f'''s_sub_u32 s3, s6, 16
s_cmp_lt_u32 s3, 14
s_cbranch_scc0 L_noe
s_mul_i32 s7, s5, 14
s_add_u32 s3, s3, s7
s_bfe_u32 s7, s3, 0x20001
s_and_b32 s59, s3, 1
s_lshl_b32 s59, s59, 2
s_add_u32 s59, s59, s7
s_mul_i32 s59, s59, 28
s_lshr_b32 s7, s3, 3
s_add_u32 s59, s59, s7
s_lshl_b32 s59, s59, 9
s_add_u32 s59, s59, {EF}''')
        for k in range(8): a(f's_load_dword s8, s[30:31], s59 offset:{128*(k&3)+7168*(k>>2)}')
        a('L_noe:')
    if 'q' in pre:
        a(f'''s_cmp_lt_u32 s6, 16
s_cbranch_scc0 L_noq
s_lshl_b32 s59, s5, 5
s_add_u32 s59, s59, s6
s_lshl_b32 s59, s59, 9
s_add_u32 s59, s59, {EQ}''')
        for k in range(8): a(f's_load_dword s8, s[30:31], s59 offset:{128*(k&3)+8192*(k>>2)}')
        a('L_noq:')
    a(f'''s_mov_b64 exec, -1
s_mov_b32 s68, {xtries or BUD//20}
s_lshl_b32 s3, s5, 8
s_add_u32 s3, s3, {EX}
v_and_b32 v4, 31, v0
v_lshlrev_b32 v4, 3, v4
v_add_u32 v4, s3, v4
v_mov_b32 v5, {F_MODE}
L_px:
s_sleep {xsleep}
buffer_load_dwordx2 v[6:7], v4, s[44:47], 0 offen sc1
s_waitcnt vmcnt(0)
v_cmp_ne_u32 vcc, s60, v7
s_cbranch_vccz L_px_d
s_sub_u32 s68, s68, 1
s_cbranch_scc0 L_px
s_mov_b32 s63, -1
L_px_d:
v_cmp_ne_u32 vcc, s63, v6
s_cmp_eq_u64 vcc, 0
s_cselect_b32 s3, {2 if forceglobal else 1}, 2
v_mov_b32 v6, s3
s_mov_b64 exec, 1
ds_write_b32 v5, v6
s_waitcnt lgkmcnt(0)''')
    if 'o' in pre:
        a(f's_lshl_b32 s3, s5, 16\ns_lshl_b32 s7, s6, 9\ns_add_u32 s3, s3, s7\ns_add_u32 s3, s3, {EO}')
        for hd in range(4):
            for k in range(4): a(f's_load_dword s8, s[30:31], s3 offset:{16384*hd+128*k}')
    if 'f' in pre:
        a(f's_add_u32 s7, s6, 28\ns_and_b32 s7, s7, 31\ns_lshl_b32 s3, s5, 6\ns_add_u32 s3, s3, s7\ns_lshl_b32 s3, s3, 10\ns_add_u32 s3, s3, {ES+32*1024}')
        for k in range(8): a(f's_load_dword s8, s[30:31], s3 offset:{128*k}')
    if 's' in pre:
        a(f's_and_b32 s3, s6, 7\ns_lshl_b32 s3, s3, 6\ns_lshr_b32 s7, s6, 3\ns_add_u32 s3, s3, s7\ns_lshl_b32 s7, s5, 2\ns_add_u32 s3, s3, s7\ns_lshl_b32 s3, s3, 10\ns_add_u32 s3, s3, {ES}')
        for k in range(8): a(f's_load_dword s8, s[30:31], s3 offset:{128*k}')
    if pads: a('s_mov_b64 exec, 0\ns_cbranch_execz L_pad0')
    a('s_endpgm')
    v = V(8)
    vFL = v('FL'); vFLW = v('FLW'); vONE = v('ONE')
    tmp = v('tmp', 8, 4); X = v('X', 8, 4)
    def setflag(off): a(f's_mov_b64 exec, 1\nds_write_b32 v{vFLW}, v{vONE} offset:{off-FL}\ns_mov_b64 exec, -1')
    a(f'''L_comp:
s_barrier
s_setprio {cprio}
s_sub_u32 s4, s4, 1               ; w
s_mov_b32 s46, {WSZ}
s_mov_b32 s47, 0x20000
s_waitcnt lgkmcnt(0)
s_load_dword s60, s[30:31], {EPOCH}
s_mov_b32 s44, s30
s_mov_b32 s45, s31
s_mov_b32 s68, {BUD}
s_mov_b32 s24, 0x0c0c0400
s_mov_b32 s25, 0x04000c0c
s_mov_b32 s20, 0x07060500
s_mov_b32 s21, 0x07060501
s_mov_b32 s22, 0x07060502
s_mov_b32 s23, 0x07060503
s_cmp_lt_u32 s6, 16
s_cbranch_scc0 L_ffnunit
s_lshr_b32 s57, s6, 2
s_lshl_b32 s59, s5, 5
s_add_u32 s59, s59, s6
s_lshl_b32 s59, s59, 9
s_add_u32 s59, s59, {EQ}
s_movk_i32 s61, 0x2000
s_mov_b32 s58, -1
s_branch L_unitdone
L_ffnunit:
s_lshl_b32 s3, s5, 4
s_add_u32 s3, s3, s6
s_sub_u32 s3, s3, 16
s_bfe_u32 s57, s3, 0x20001
s_and_b32 s59, s3, 1
s_lshl_b32 s59, s59, 2
s_add_u32 s59, s59, s57
s_andn2_b32 s7, s3, 7
s_add_u32 s59, s59, s7
s_lshl_b32 s59, s59, 10
s_add_u32 s59, s59, {EF}
s_movk_i32 s61, 512
s_mov_b32 s58, s3
s_cmp_lt_u32 s3, 112
s_cbranch_scc1 L_unitdone
s_mov_b32 s57, 0
s_mov_b32 s59, {DUMMY}
s_mov_b32 s58, -1
L_unitdone:''')
    T(1)
    vTR = v('TR'); vTV = v('TV', 2); vKA = v('KA', 4); vAX = v('AX'); vAO = v('AO'); vAH = v('AH')
    vQB = v('QB'); vPB = v('PB'); vP1 = v('P1'); vGQ = v('GQ'); vGH = v('GH'); vPO = v('PO'); vGO = v('GO')
    vPS = v('PS'); vQW = v('QW'); vPW = v('PW'); vMX = v('MXa'); vHW = v('HW'); vOW = v('OW'); vGR = v('GR'); vPH = v('PH')
    a(f'''v_mov_b32 v{vFL}, {FL}
v_lshrrev_b32 v{tmp+6}, 5, v0
v_and_b32 v5, 31, v0
v_lshlrev_b32 v2, 10, v{tmp+6}
v_lshl_add_u32 v2, v5, 5, v2
v_add_u32 v2, {LP}, v2
s_lshl_b32 s3, s57, 8
v_lshlrev_b32 v1, 10, v{tmp+6}
v_lshl_add_u32 v1, v5, 3, v1
v_add_u32 v1, s3, v1
v_add_u32 v1, {LP}, v1            ; raw x: this unit's rows, 4 values per lane
v_mul_u32_u24 v3, {XS}, v{tmp+6}
v_lshl_add_u32 v3, v5, 3, v3
v_add_u32 v3, {XN}, v3            ; normalised rows''')
    F = v('F', 16, 4); D = v('Dd', 16, 4)
    spin(vFL, F_LD+12-FL, tmp, 1)
    a(f'ds_read_b128 {vr(X,4)}, v2\nds_read_b128 {vr(X+4,4)}, v2 offset:16\nds_read_b64 {vr(tmp+4,2)}, v1\ns_waitcnt lgkmcnt(1)')
    T(2)
    for i in range(8):
        a(f'v_lshlrev_b32 v{F+2*i}, 16, v{X+i}\nv_and_b32 v{F+2*i+1}, 0xffff0000, v{X+i}')
    def red32l(r, t):
        a(f'v_mov_b32 v{t}, v{r}\nv_permlane16_swap_b32 v{r}, v{t}\nv_add_f32 v{r}, v{r}, v{t}')
        for k in (8, 4, 2, 1): a(f'v_add_f32_dpp v{r}, v{r}, v{r} row_ror:{k} row_mask:0xf bank_mask:0xf')
    for i in range(4): a(f'v_pk_add_f32 {vr(D+2*i,2)}, {vr(F+4*i,2)}, {vr(F+4*i+2,2)}')
    a(f'''v_pk_add_f32 {vr(D,2)}, {vr(D,2)}, {vr(D+2,2)}
v_pk_add_f32 {vr(D+4,2)}, {vr(D+4,2)}, {vr(D+6,2)}
v_pk_add_f32 {vr(D,2)}, {vr(D,2)}, {vr(D+4,2)}
v_add_f32 v{tmp}, v{D}, v{D+1}''')
    red32l(tmp, tmp+1)
    a(f'v_mul_f32 v{tmp}, 0xbb000000, v{tmp}          ; -mean')
    for i in range(8): a(f'v_pk_add_f32 {vr(F+2*i,2)}, {vr(F+2*i,2)}, {vr(tmp,2)} op_sel_hi:[1,0]')
    a(f'v_pk_mul_f32 {vr(D,2)}, {vr(F,2)}, {vr(F,2)}\nv_pk_mul_f32 {vr(D+2,2)}, {vr(F+2,2)}, {vr(F+2,2)}')
    for i in range(2, 8): a(f'v_pk_fma_f32 {vr(D+2*(i&1),2)}, {vr(F+2*i,2)}, {vr(F+2*i,2)}, {vr(D+2*(i&1),2)}')
    a(f'''v_pk_add_f32 {vr(D,2)}, {vr(D,2)}, {vr(D+2,2)}
v_cvt_pk_bf16_f32 v{tmp}, v{tmp}, v{tmp}
v_add_f32 v{tmp+2}, v{D}, v{D+1}
v_lshlrev_b32 v{tmp}, 16, v{tmp}          ; -bf16(mean)''')
    red32l(tmp+2, tmp+3)
    a(f'''v_mul_f32 v{tmp+2}, 0x3b000000, v{tmp+2}
s_waitcnt lgkmcnt(0)
v_cvt_pk_bf16_f32 v{tmp+2}, v{tmp+2}, v{tmp+2}
v_lshlrev_b32 v{F}, 16, v{tmp+4}
v_lshlrev_b32 v{tmp+2}, 16, v{tmp+2}
v_and_b32 v{F+1}, 0xffff0000, v{tmp+4}
v_add_f32 v{tmp+2}, 0x3727c5ac, v{tmp+2}
v_lshlrev_b32 v{F+2}, 16, v{tmp+5}
v_cvt_pk_bf16_f32 v{tmp+2}, v{tmp+2}, v{tmp+2}
v_and_b32 v{F+3}, 0xffff0000, v{tmp+5}
v_lshlrev_b32 v{tmp+2}, 16, v{tmp+2}
v_sqrt_f32 v{tmp+2}, v{tmp+2}
v_pk_add_f32 {vr(F,2)}, {vr(F,2)}, {vr(tmp,2)} op_sel_hi:[1,0]
v_pk_add_f32 {vr(F+2,2)}, {vr(F+2,2)}, {vr(tmp,2)} op_sel_hi:[1,0]
v_cvt_pk_bf16_f32 v{tmp+2}, v{tmp+2}, v{tmp+2}
v_cvt_pk_bf16_f32 v{tmp+4}, v{F}, v{F+1}
v_lshlrev_b32 v{tmp+2}, 16, v{tmp+2}
v_cvt_pk_bf16_f32 v{tmp+5}, v{F+2}, v{F+3}
v_rcp_f32 v{tmp+2}, v{tmp+2}
v_lshlrev_b32 v{F}, 16, v{tmp+4}
v_and_b32 v{F+1}, 0xffff0000, v{tmp+4}
v_lshlrev_b32 v{F+2}, 16, v{tmp+5}
v_and_b32 v{F+3}, 0xffff0000, v{tmp+5}
v_pk_mul_f32 {vr(F,2)}, {vr(F,2)}, {vr(tmp+2,2)} op_sel_hi:[1,0]
v_pk_mul_f32 {vr(F+2,2)}, {vr(F+2,2)}, {vr(tmp+2,2)} op_sel_hi:[1,0]
v_cvt_pk_bf16_f32 v{tmp+4}, v{F}, v{F+1}
v_cvt_pk_bf16_f32 v{tmp+5}, v{F+2}, v{F+3}
ds_write_b64 v3, {vr(tmp+4,2)}''')
    BA = v('BA', 64, 4); BB = v('BB', 64, 4); ACC = v('ACC', 8, 4)
    G = F
    a(f'''s_lshl_b32 s3, s4, 2
s_add_u32 s3, s3, {FL}
v_mov_b32 v{vFLW}, s3
v_mov_b32 v{vONE}, 1
v_lshrrev_b32 v1, 2, v0           ; l>>2
v_and_b32 v2, 3, v0               ; l&3
v_lshrrev_b32 v3, 4, v0           ; kg
v_and_b32 v7, 3, v1
v_lshl_add_u32 v7, v3, 3, v7
s_lshl_b32 s3, s4, 1
v_and_b32 v5, 7, v1
v_xor_b32 v5, s3, v5
v_lshlrev_b32 v6, 8, v7
v_lshl_add_u32 v6, v2, 3, v6
v_add_u32 v6, {LV}, v6
v_lshl_add_u32 v{vTV}, v5, 5, v6
v_xor_b32 v{vTV+1}, 32, v{vTV}
v_lshlrev_b32 v6, 4, v3           ; kg*16
v_and_b32 v4, 1, v0               ; l&1
v_mul_u32_u24 v5, {XS}, v4
v_add_u32 v5, v5, v6
v_add_u32 v{vAX}, {XN}, v5
s_lshl_b32 s3, s4, 7
s_add_u32 s3, s3, s59
v_mul_u32_u24 v5, s61, v4
v_add3_u32 v5, s3, v5, v6
v_bfe_u32 v4, v0, 1, 1
v_lshl_add_u32 v{vP1}, v4, 6, v5
v_cmp_eq_u32 s[64:65], 1, v4''')
    for ks in range(4): a(f'ds_read_b128 {vr(BB+4*ks,4)}, v{vAX} offset:{64*ks}')
    for i in range(8): a(f'v_mov_b32 v{ACC+i}, 0')
    a(f's_waitcnt lgkmcnt(0)\ns_add_u32 s60, s60, {TAGINC}\nv_mov_b32 v{tmp+7}, s60')
    spin(vFL, F_LD-FL, tmp, 1)
    T(3)
    for ks in range(4):
        for u in range(2):
            r = BA+8*ks+4*u
            a(f'ds_read_b64_tr_b16 {vr(r,2)}, v{vTV+u} offset:{LW1-LV+8192*ks}\nds_read_b64_tr_b16 {vr(r+2,2)}, v{vTV+u} offset:{LW1-LV+8192*ks+1024}')
    for i in range(8):
        ks, u = i >> 1, i & 1
        a(f's_waitcnt lgkmcnt({14-2*i})')
        a(f'v_mfma_f32_16x16x32_bf16 {vr(ACC+4*u,4)}, {vr(BA+4*i,4)}, {vr(BB+4*ks,4)}, {vr(ACC+4*u,4)}')
    setflag(F_W1F)
    for i in range(4): a(f'v_cndmask_b32 v{ACC+i}, v{ACC+i}, v{ACC+4+i}, s[64:65]')
    for i in range(4): a(f'v_add_u32 v{ACC+i}, 0x80, v{ACC+i}')
    for i in range(4): a(f'v_perm_b32 v{ACC+i}, v{ACC+i}, v{tmp+7}, s{20+i}')
    a(f's_mov_b32 exec_lo, 0x000f000f\ns_mov_b32 exec_hi, 0x000f000f\nbuffer_store_dwordx4 {vr(ACC,4)}, v{vP1}, s[44:47], 0 offen sc0')
    a('s_mov_b64 exec, -1')
    T(4)
    a(f'''v_lshrrev_b32 v1, 2, v0           ; l>>2
v_and_b32 v2, 3, v0               ; l&3
v_lshrrev_b32 v3, 4, v0           ; kg
v_and_b32 v4, 15, v0              ; n
v_bfe_u32 v5, v0, 3, 2
v_xor_b32 v5, s4, v5
v_lshlrev_b32 v5, 5, v5
v_and_b32 v7, 3, v1
v_lshl_add_u32 v7, v3, 3, v7
v_lshl_add_u32 v5, v7, 7, v5
v_lshl_add_u32 v5, v2, 3, v5
v_add_u32 v{vTR}, {LWO}, v5
s_lshl_b32 s3, s4, 14
v_lshlrev_b32 v6, 8, v4
v_add_u32 v6, s3, v6
v_xor_b32 v5, v3, v4
v_lshl_add_u32 v{vKA}, v5, 4, v6
v_xor_b32 v{vKA+1}, 64, v{vKA}
v_xor_b32 v{vKA+2}, 0x80, v{vKA}
v_xor_b32 v{vKA+3}, 0xc0, v{vKA}
v_lshlrev_b32 v6, 4, v3           ; kg*16
v_and_b32 v{tmp+3}, 1, v0         ; l&1
v_and_b32 v5, 1, v1               ; (l>>2)&1
v_mul_u32_u24 v7, {OS}, v{tmp+3}
v_add_u32 v7, v7, v6
v_add_u32 v{vAO}, {LO}, v7
v_lshl_add_u32 v7, v{tmp+3}, 7, v6
v_add_u32 v{vAH}, {LH}, v7
v_mul_u32_u24 v7, {QS}, v2
v_add_u32 v7, v7, v6
v_add_u32 v{vQB}, {LQ}, v7
v_mul_u32_u24 v7, {PS_}, v2
v_add_u32 v7, v7, v6
v_add_u32 v{vPB}, {LP}, v7
v_and_b32 v{tmp+1}, 1, v3         ; kg&1
s_lshr_b32 s3, s58, 3
s_lshl_b32 s3, s3, 13
s_and_b32 s7, s58, 7
s_lshl_b32 s7, s7, 6
s_add_u32 s3, s3, s7
s_add_u32 s3, s3, {EF}
v_lshlrev_b32 v7, 9, v1
v_lshl_add_u32 v7, v2, 4, v7
v_add_u32 v{vGR}, s3, v7
s_lshl_b32 s3, s58, 7
s_add_u32 s3, s3, {EH}
v_lshlrev_b32 v7, 6, v5
v_lshl_add_u32 v7, v2, 4, v7
v_lshl_add_u32 v7, v{tmp+1}, 3, v7
v_add_u32 v{vPH}, s3, v7
s_sub_u32 s7, s6, 4
s_cselect_b32 s7, 0, s7
s_lshl_b32 s3, s7, 9
s_add_u32 s3, s3, {EH}
v_lshlrev_b32 v7, 3, v0
v_add_u32 v{vGH}, s3, v7
v_bfe_u32 v7, v0, 3, 1
v_lshlrev_b32 v7, 7, v7
v_lshl_add_u32 v7, v3, 5, v7
v_and_b32 v{tmp+5}, 7, v0
v_lshl_add_u32 v7, v{tmp+5}, 2, v7
v_add_u32 v{vHW}, {LH}, v7
s_lshr_b32 s7, s6, 4
s_lshl_b32 s3, s5, 1
s_add_u32 s3, s3, s7
s_lshl_b32 s3, s3, 4
s_add_u32 s3, s3, s4
s_lshl_b32 s3, s3, 9
s_add_u32 s3, s3, {EQ}
v_lshrrev_b32 v{tmp+2}, 5, v0     ; l>>5
v_and_b32 v5, 31, v0
v_lshlrev_b32 v7, 11, v{tmp+2}
v_lshl_add_u32 v7, v5, 4, v7
v_add_u32 v{vGQ}, s3, v7
s_mul_i32 s3, s4, {QS}
s_add_u32 s3, s3, {LQ}
v_lshlrev_b32 v7, 2, v{tmp+2}
v_lshl_add_u32 v7, v5, 3, v7
v_add_u32 v{vQW}, s3, v7
v_bfe_u32 v6, v0, 3, 1
v_and_b32 v7, 7, v0
s_lshr_b32 s3, s6, 3
s_lshl_b32 s7, s5, 2
s_add_u32 s66, s3, s7             ; hq
s_lshl_b32 s3, s66, 14
s_lshl_b32 s7, s4, 7
s_add_u32 s3, s3, s7
s_add_u32 s3, s3, {EO}
v_lshlrev_b32 v5, 13, v6
v_lshl_add_u32 v5, v3, 11, v5
v_lshl_add_u32 v5, v7, 4, v5
v_add_u32 v{vGO}, s3, v5
s_lshl_b32 s3, s4, 6
s_add_u32 s3, s3, {LO}
v_mul_u32_u24 v5, {OS}, v6
v_lshl_add_u32 v5, v7, 3, v5
v_lshl_add_u32 v5, v{tmp+1}, 2, v5
v_lshl_add_u32 v5, v{tmp+2}, 1, v5
v_add_u32 v{vOW}, s3, v5
; o publish
s_lshl_b32 s3, s5, 16
s_lshl_b32 s7, s6, 9
s_add_u32 s3, s3, s7
s_lshl_b32 s7, s4, 7
s_add_u32 s3, s3, s7
s_add_u32 s3, s3, {EO}
v_lshlrev_b32 v5, 14, v2
v_and_b32 v6, 1, v1
v_lshl_add_u32 v5, v6, 6, v5
v_lshl_add_u32 v5, v3, 4, v5
v_add_u32 v{vPO}, s3, v5
s_lshl_b32 s3, s4, 7
s_add_u32 s3, s3, {LP}
v_mul_u32_u24 v5, {PS_}, v2
v_and_b32 v6, 3, v1
v_lshl_add_u32 v5, v6, 5, v5
v_lshl_add_u32 v5, v3, 3, v5
v_add_u32 v{vPW}, s3, v5
v_lshlrev_b32 v5, 2, v2
v_add_u32 v{vMX}, {MX}, v5
s_and_b32 s3, s6, 7
s_lshl_b32 s3, s3, 6
s_add_u32 s3, s3, s66
s_lshl_b32 s66, s3, 9             ; s slot
s_add_u32 s7, s6, 28
s_and_b32 s7, s7, 31
s_lshl_b32 s67, s5, 6
s_add_u32 s7, s7, s67
s_add_u32 s7, s7, 32
s_lshl_b32 s67, s7, 9             ; f slot
s_lshl_b32 s3, s4, 7
s_add_u32 s3, s3, {ES}
v_lshlrev_b32 v5, 5, v3
v_lshl_add_u32 v5, v{tmp+3}, 4, v5
v_add_u32 v{vPS}, s3, v5''')
    for i in range(64): a(f'v_mov_b32 v{BB+i}, 0')
    spin(vFL, F_MODE-FL, tmp, 1)
    a(f'''v_readfirstlane_b32 s62, v{tmp}
s_sub_u32 s62, s62, 1
s_cmp_eq_u32 s62, 0
s_cbranch_scc1 L_p1done
s_mov_b32 exec_lo, 0x000f000f
s_mov_b32 exec_hi, 0x000f000f
buffer_store_dwordx4 {vr(ACC,4)}, v{vP1}, s[44:47], 0 offen sc1
s_mov_b64 exec, -1
L_p1done:''')
    if qsleep: a(f's_sleep {qsleep}')
    RB()
    a('s_movk_i32 s34, 0x1000')
    HG = v('HG', 4, 4)
    a(f's_cmp_lg_u32 s4, 0\ns_cselect_b32 s58, -1, s58\ns_cmp_lt_i32 s58, 0\ns_cbranch_scc1 L_nored0\nbuffer_load_dwordx4 {vr(HG,4)}, v{vGR}, s[44:47], 0 offen sc1\nL_nored0:')
    if 'qg' not in skip: ppoll([(G, vGQ, '0', 0, 'P'), (G+4, vGQ, 's34', 0, 'P')], 44, 'pq', tp=tmp)
    T(5)
    if diag and keep and '#q' in keep: C(14)
    for i in range(8): a(f'v_and_b32 v{G+i}, 0xffffff00, v{G+i}')
    a(f'''v_pk_add_f32 {vr(G,2)}, {vr(G,2)}, {vr(G+4,2)}
v_pk_add_f32 {vr(G+2,2)}, {vr(G+2,2)}, {vr(G+6,2)}
v_permlane32_swap_b32 v{G}, v{G+2}
v_permlane32_swap_b32 v{G+1}, v{G+3}
v_pk_add_f32 {vr(G,2)}, {vr(G,2)}, {vr(G+2,2)}
v_cvt_pk_bf16_f32 v{G}, v{G}, v{G+1}
ds_write_b32 v{vQW}, v{G}
s_waitcnt lgkmcnt(0)''')
    setflag(F_S2)
    a('s_cmp_lt_i32 s58, 0\ns_cbranch_scc1 L_nored')
    ppoll([(HG, vGR, '0', 0, 'P')], 44, 'pr', issued=True, tp=tmp)
    for i in range(4): a(f'v_and_b32 v{HG+i}, 0xffffff00, v{HG+i}')
    for i in range(4): a(f'v_add_f32_dpp v{HG+i}, v{HG+i}, v{HG+i} row_ror:8 row_mask:0xf bank_mask:0xf')
    a(f'''v_permlane16_swap_b32 v{HG}, v{HG+2}
v_permlane16_swap_b32 v{HG+1}, v{HG+3}
v_pk_add_f32 {vr(HG,2)}, {vr(HG,2)}, {vr(HG+2,2)}
v_cvt_pk_bf16_f32 v{HG}, v{HG}, v{HG+1}
v_mov_b32 v{HG+1}, v{HG}
v_permlane32_swap_b32 v{HG}, v{HG+1}
v_lshlrev_b32 v{tmp}, 16, v{HG}
v_and_b32 v{tmp+1}, 0xffff0000, v{HG}
v_mul_f32 v{tmp+2}, 0xbfb8aa3b, v{tmp}
v_mul_f32 v{tmp+3}, 0xbfb8aa3b, v{tmp+1}
v_exp_f32 v{tmp+2}, v{tmp+2}
v_exp_f32 v{tmp+3}, v{tmp+3}
v_lshlrev_b32 v{HG+2}, 16, v{HG+1}
v_add_f32 v{tmp+2}, 1.0, v{tmp+2}
v_add_f32 v{tmp+3}, 1.0, v{tmp+3}
v_rcp_f32 v{tmp+2}, v{tmp+2}
v_rcp_f32 v{tmp+3}, v{tmp+3}
v_and_b32 v{HG+3}, 0xffff0000, v{HG+1}
v_mul_f32 v{tmp}, v{tmp}, v{tmp+2}
v_mul_f32 v{tmp+1}, v{tmp+1}, v{tmp+3}
v_cvt_pk_bf16_f32 v{tmp}, v{tmp}, v{tmp+1}
v_and_b32 v{tmp+1}, 0xffff0000, v{tmp}
v_lshlrev_b32 v{tmp}, 16, v{tmp}
v_mul_f32 v{tmp}, v{tmp}, v{HG+2}
v_mul_f32 v{tmp+1}, v{tmp+1}, v{HG+3}
v_cvt_pk_bf16_f32 v{tmp}, v{tmp}, v{tmp+1}
v_mov_b32 v{tmp+1}, s60
s_mov_b32 exec_lo, 0x00ff00ff
s_mov_b32 exec_hi, 0
buffer_store_dwordx2 {vr(tmp,2)}, v{vPH}, s[44:47], 0 offen sc1
s_mov_b64 exec, -1
L_nored:''')
    spin(vFL, F_S2-FL, tmp)
    for t in range(4):
        a(f's_mov_b32 exec_lo, {0x000f000f << (4*t)}\ns_mov_b32 exec_hi, {0x000f000f << (4*t)}')
        for ks in range(4): a(f'ds_read_b128 {vr(BB+16*t+4*ks,4)}, v{vQB} offset:{64*ks}')
    a('s_mov_b64 exec, -1')
    for i in range(4): a(f'v_mov_b32 v{ACC+i}, 0')
    spin(vFL, F_LD+4-FL, tmp, 1)
    T(6)
    for t in range(4):
        for ks in range(4): a(f'ds_read_b128 {vr(BA+16*t+4*ks,4)}, v{vKA+ks} offset:{4096*t}')
    for i in range(16):
        a(f's_waitcnt lgkmcnt({15-i})')
        a(f'v_mfma_f32_16x16x32_bf16 {vr(ACC,4)}, {vr(BA+4*i,4)}, {vr(BB+4*i,4)}, {vr(ACC,4)}')
    S = v('S', 4, 4); M = v('M'); L_ = v('L')
    def rne4(src, dst, t):
        a(f'''v_cvt_pk_bf16_f32 v{t}, v{src}, v{src+1}
v_cvt_pk_bf16_f32 v{t+1}, v{src+2}, v{src+3}
v_lshlrev_b32 v{dst}, 16, v{t}
v_and_b32 v{dst+1}, 0xffff0000, v{t}
v_lshlrev_b32 v{dst+2}, 16, v{t+1}
v_and_b32 v{dst+3}, 0xffff0000, v{t+1}''')
    hld = f'buffer_load_dwordx2 {vr(HG,2)}, v{vGH}, s[44:47], 0 offen sc1'
    for i in range(16, 24): a(f'v_mov_b32 v{BB+i}, 0')
    rne4(ACC, S, tmp)
    for i in range(4): a(f'v_mul_f32 v{S+i}, 0x3db504f3, v{S+i}')
    rne4(S, S, tmp)
    def xl(op, r, t):
        a(f'''{op}_dpp v{r}, v{r}, v{r} row_ror:4 row_mask:0xf bank_mask:0xf
{op}_dpp v{r}, v{r}, v{r} row_ror:8 row_mask:0xf bank_mask:0xf
v_mov_b32 v{t}, v{r}
v_permlane16_swap_b32 v{r}, v{t}
{op} v{r}, v{r}, v{t}
v_mov_b32 v{t}, v{r}
v_permlane32_swap_b32 v{r}, v{t}
{op} v{r}, v{r}, v{t}''')
    a(f'v_max3_f32 v{M}, v{S}, v{S+1}, v{S+2}\nv_max_f32 v{M}, v{M}, v{S+3}')
    xl('v_max_f32', M, tmp)
    a(f'''s_lshl_b32 s3, s4, 4
v_add_u32 v{tmp+4}, s3, v{vMX}
s_mov_b64 exec, 15
ds_write_b32 v{tmp+4}, v{M}
s_mov_b64 exec, -1
s_waitcnt lgkmcnt(0)''')
    setflag(F_S3)
    for i in range(24, 64): a(f'v_mov_b32 v{BB+i}, 0')
    spin(vFL, F_S3-FL, tmp)
    a(f'''ds_read2_b32 {vr(tmp,2)}, v{vMX} offset0:0 offset1:4
ds_read2_b32 {vr(tmp+2,2)}, v{vMX} offset0:8 offset1:12
s_waitcnt lgkmcnt(0)
v_max3_f32 v{M}, v{tmp}, v{tmp+1}, v{tmp+2}
v_max_f32 v{M}, v{M}, v{tmp+3}''')
    for i in range(4): a(f'v_sub_f32 v{S+i}, v{S+i}, v{M}')
    for i in range(4): a(f'v_mul_f32 v{S+i}, 0x3fb8aa3b, v{S+i}')
    for i in range(4): a(f'v_exp_f32 v{S+i}, v{S+i}')
    a(f'''v_add_f32 v{L_}, v{S}, v{S+1}
v_add_f32 v{tmp}, v{S+2}, v{S+3}
v_cvt_pk_bf16_f32 v{tmp+2}, v{S}, v{S+1}
v_cvt_pk_bf16_f32 v{tmp+3}, v{S+2}, v{S+3}
v_add_f32 v{L_}, v{L_}, v{tmp}
ds_write_b64 v{vPW}, {vr(tmp+2,2)}''')
    xl('v_add_f32', L_, tmp)
    a(f'''s_mov_b64 exec, 15
ds_write_b32 v{tmp+4}, v{L_} offset:{LS-MX}
s_mov_b64 exec, -1''')
    a('s_waitcnt lgkmcnt(0)')
    setflag(F_S4)
    HA = X; WD = D
    for ks in range(2): a(f'ds_read_b64_tr_b16 {vr(WD+4*ks,2)}, v{vTR} offset:{LWD-LWO+4096*ks}\nds_read_b64_tr_b16 {vr(WD+4*ks+2,2)}, v{vTR} offset:{LWD-LWO+4096*ks+512}')
    for i in range(8): a(f'v_mov_b32 v{ACC+i}, 0')
    spin(vFL, F_S4-FL, tmp)
    OG = S; RL = v('RL', 2, 2)
    a(f'''ds_read2_b32 {vr(tmp,2)}, v{vMX} offset0:16 offset1:20
ds_read2_b32 {vr(tmp+2,2)}, v{vMX} offset0:24 offset1:28''')
    for u in range(2):
        a(f's_mov_b32 exec_lo, {0x000f000f << (4*u)}\ns_mov_b32 exec_hi, {0x000f000f << (4*u)}')
        for ks in range(8): a(f'ds_read_b128 {vr(BB+32*u+4*ks,4)}, v{vPB} offset:{64*ks}')
    a(f'''s_mov_b64 exec, -1
s_waitcnt lgkmcnt(0)
v_add_f32 v{tmp}, v{tmp}, v{tmp+1}
v_add_f32 v{tmp+2}, v{tmp+2}, v{tmp+3}
v_add_f32 v{tmp}, v{tmp}, v{tmp+2}
v_rcp_f32 v{RL}, v{tmp}
v_log_f32 v{tmp}, v{tmp}
v_mov_b32 v{tmp+1}, 0x3fb8aa3b
v_fma_f32 v{OG+2}, v{M}, v{tmp+1}, v{tmp}
v_mov_b32 v{OG+3}, s60''')
    a(hld)
    T(7)
    def pv(k0, k1):
        n = 2*(k1-k0); dep = 4
        items = [(ks, u) for ks in range(k0, k1) for u in range(2)]
        def mf(i):
            ks, u = items[i]
            a(f'v_mfma_f32_16x16x32_bf16 {vr(ACC,4)}, {vr(BA+8*ks+4*u,4)}, {vr(BB+32*u+4*ks,4)}, {vr(ACC,4)}')
        for i, (ks, u) in enumerate(items):
            r = BA+8*ks+4*u
            a(f'ds_read_b64_tr_b16 {vr(r,2)}, v{vTV+u} offset:{8192*ks}\nds_read_b64_tr_b16 {vr(r+2,2)}, v{vTV+u} offset:{8192*ks+1024}')
            if i >= dep: a(f's_waitcnt lgkmcnt({2*dep})'); mf(i-dep)
        for i in range(max(n-dep, 0), n):
            a(f's_waitcnt lgkmcnt({2*(n-1-i)})'); mf(i)
    if vsplit:
        PAD()
        spin(vFL, F_LD+8-FL, tmp, 1)
        pv(0, vs)
    PAD()
    a('s_barrier                          ; B1')
    T(8)
    pv(vs if vsplit else 0, 8)
    PAD()
    a(f'''s_mov_b32 exec_lo, 0x00ff00ff
s_mov_b32 exec_hi, 0x00ff00ff
s_cmp_eq_u32 s62, 0
v_pk_mul_f32 {vr(ACC,2)}, {vr(ACC,2)}, {vr(RL,2)} op_sel_hi:[1,0]
v_pk_mul_f32 {vr(ACC+2,2)}, {vr(ACC+2,2)}, {vr(RL,2)} op_sel_hi:[1,0]
v_cvt_pk_bf16_f32 v{OG}, v{ACC}, v{ACC+1}
v_cvt_pk_bf16_f32 v{OG+1}, v{ACC+2}, v{ACC+3}''')
    st2(f'buffer_store_dwordx4 {vr(OG,4)}, v{vPO}, s[44:47], 0 offen', 'po_st')
    a('s_mov_b64 exec, -1')
    T(9)
    a(f'''s_waitcnt vmcnt(1)
L_ph:
v_cmp_ne_u32 vcc, s60, v{HG+1}
s_cbranch_vccz L_ph_d
{hld}
s_sub_u32 s68, s68, 1
s_waitcnt vmcnt(0)
s_cbranch_scc0 L_ph
s_mov_b32 s68, 0
L_ph_d:
ds_write_b32 v{vHW}, v{HG}''')
    for ks in range(2): a(f'ds_read_b128 {vr(HA+4*ks,4)}, v{vAH} offset:{64*ks}')
    for k2 in range(2): a(f's_waitcnt lgkmcnt({1-k2})\nv_mfma_f32_16x16x32_bf16 {vr(ACC+4,4)}, {vr(WD+4*k2,4)}, {vr(HA+4*k2,4)}, {vr(ACC+4,4)}')
    PAD()
    a('s_mov_b32 exec_lo, 0x00030003\ns_mov_b32 exec_hi, 0x00030003\ns_cmp_eq_u32 s62, 0')
    for i in range(4): a(f'v_add_u32 v{ACC+4+i}, 0x80, v{ACC+4+i}')
    for i in range(4): a(f'v_perm_b32 v{ACC+4+i}, v{ACC+4+i}, v{OG+3}, s{20+i}')
    st2(f'buffer_store_dwordx4 {vr(ACC+4,4)}, v{vPS}, s[44:47], s67 offen', 'pfs')
    a('s_mov_b64 exec, -1')
    oit = [(G+4*i, vGO, '0', 512*i, [3]) for i in range(4)]
    if osleep == 'w': a('s_waitcnt vmcnt(0)')
    elif osleep: a(f's_sleep {osleep}')
    for it in oit: a(f'buffer_load_dwordx4 {vr(it[0],4)}, v{it[1]}, s[44:47], 0 offen offset:{it[3]} sc1')
    for i in range(4): a(f'v_mov_b32 v{ACC+i}, 0')
    wort = lambda ks: f'ds_read_b64_tr_b16 {vr(BB+4*ks,2)}, v{vTR} offset:{4096*ks}\nds_read_b64_tr_b16 {vr(BB+4*ks+2,2)}, v{vTR} offset:{4096*ks+512}'
    if b2a:
        a('s_barrier                          ; B2a')
        for ks in range(4): a(wort(ks))
    PAD()
    RB()
    ppoll(oit, 44, 'po', issued=True)
    T(10)
    if not (diag and keep and '#q' in keep): C(14)
    Wt = HG; U = D; Aa = v('Aa', 6, 2)
    a(f'''v_max3_f32 v{M}, v{G+2}, v{G+6}, v{G+10}
v_max_f32 v{M}, v{M}, v{G+14}
v_mov_b32 v{tmp}, v{M}''')
    for i in range(2): a(f'v_lshlrev_b32 v{U+4*i}, 16, v{G+4*i}')
    a(f'v_permlane16_swap_b32 v{M}, v{tmp}\nv_max_f32 v{M}, v{M}, v{tmp}\nv_mov_b32 v{tmp}, v{M}')
    for i in range(2, 4): a(f'v_lshlrev_b32 v{U+4*i}, 16, v{G+4*i}')
    a(f'v_permlane32_swap_b32 v{M}, v{tmp}\nv_max_f32 v{M}, v{M}, v{tmp}')
    for i in range(4): a(f'v_sub_f32 v{Wt+i}, v{G+4*i+2}, v{M}')
    for i in range(4): a(f'v_exp_f32 v{Wt+i}, v{Wt+i}\nv_and_b32 v{U+4*i+1}, 0xffff0000, v{G+4*i}\nv_lshlrev_b32 v{U+4*i+2}, 16, v{G+4*i+1}\nv_and_b32 v{U+4*i+3}, 0xffff0000, v{G+4*i+1}')
    PAD()
    sel = lambda i: ('op_sel_hi:[1,0,1]' if i % 2 == 0 else 'op_sel:[0,1,0] op_sel_hi:[1,1,1]')
    for e in (0, 2): a(f'v_pk_mul_f32 {vr(Aa+e,2)}, {vr(U+e,2)}, {vr(Wt,2)} op_sel_hi:[1,0]')
    a(f'v_pk_add_f32 {vr(Aa+4,2)}, {vr(Wt,2)}, {vr(Wt+2,2)}')
    for i in range(1, 4):
        for e in (0, 2): a(f'v_pk_fma_f32 {vr(Aa+e,2)}, {vr(U+4*i+e,2)}, {vr(Wt+(i&2),2)}, {vr(Aa+e,2)} {sel(i)}')
        if i == 1: a(f'v_add_f32 v{Aa+4}, v{Aa+4}, v{Aa+5}')
        if i == 2: a(f'v_mov_b32 v{Aa+5}, v{Aa+4}')
    a(f'''v_permlane32_swap_b32 v{Aa+4}, v{Aa+5}
v_permlane32_swap_b32 v{Aa}, v{Aa+1}
v_permlane32_swap_b32 v{Aa+2}, v{Aa+3}
v_add_f32 v{Aa+4}, v{Aa+4}, v{Aa+5}
v_add_f32 v{Aa}, v{Aa}, v{Aa+1}
v_add_f32 v{Aa+2}, v{Aa+2}, v{Aa+3}
v_mov_b32 v{Aa+5}, v{Aa+4}
v_permlane16_swap_b32 v{Aa}, v{Aa+2}
v_permlane16_swap_b32 v{Aa+4}, v{Aa+5}
v_add_f32 v{Aa+4}, v{Aa+4}, v{Aa+5}
v_add_f32 v{Aa}, v{Aa}, v{Aa+2}
v_rcp_f32 v{Aa+4}, v{Aa+4}
v_mul_f32 v{Aa}, v{Aa}, v{Aa+4}
v_cvt_pk_bf16_f32 v{Aa}, v{Aa}, v{Aa}
ds_write_b16 v{vOW}, v{Aa}''')
    PAD()
    a('s_waitcnt lgkmcnt(0)\ns_barrier                          ; B2')
    T(11)
    for ks in range(4):
        a(f'ds_read_b128 {vr(BA+4*ks,4)}, v{vAO} offset:{64*ks}')
        if not b2a: a(wort(ks))
    for ks in range(4):
        a(f's_waitcnt lgkmcnt({3-ks if b2a else 9-3*ks})')
        a(f'v_mfma_f32_16x16x32_bf16 {vr(ACC,4)}, {vr(BB+4*ks,4)}, {vr(BA+4*ks,4)}, {vr(ACC,4)}')
    PAD()
    a('s_mov_b32 exec_lo, 0x00030003\ns_mov_b32 exec_hi, 0x00030003')
    for i in range(4): a(f'v_perm_b32 v{ACC+i}, v{ACC+i}, v{OG+3}, s{20+i}')
    a(f'buffer_store_dwordx4 {vr(ACC,4)}, v{vPS}, s[44:47], s66 offen sc1')
    if wb == 'all': a('s_cmp_lg_u32 s4, 0\ns_cbranch_scc1 L_nowb\nbuffer_wbl2 sc1\nL_nowb:')
    if wb == 'j0': a('s_or_b32 s3, s4, s6\ns_cbranch_scc1 L_nowb\nbuffer_wbl2 sc1\nL_nowb:')
    T(12)
    if diag:
        T(13)
        if diag != 'amp': a(f's_mov_b32 s{TSB+30}, 0')
        a('s_add_u32 s4, s4, 1')
    else: a('s_endpgm')
    a('L_fin:')
    if diag == 'ws': a(ts_store(16, 30, 4, srd=36))
    if diag == 'amp':
        A_, B_, sign, wave, K = amp[:5]
        if len(amp) > 5: a(f's_cmp_lg_u32 s5, {amp[5]}\ns_cbranch_scc1 L_end')
        ia, ib = NAMES.index(A_), NAMES.index(B_)
        a(f's_cmp_lg_u32 s4, {wave}\ns_cbranch_scc1 L_end\ns_waitcnt lgkmcnt(0)\ns_sub_u32 s3, s{TSB+2*ib}, s{TSB+2*ia}')
        if sign < 0: a('s_sub_u32 s3, 2000, s3')
        a(f'''s_min_u32 s3, s3, 4000
s_mul_i32 s3, s3, {K}
s_memrealtime s[34:35]
s_waitcnt lgkmcnt(0)
s_add_u32 s3, s3, s34
L_amp:
s_sleep 2
s_memrealtime s[34:35]
s_waitcnt lgkmcnt(0)
s_sub_u32 s7, s34, s3
s_cmp_lt_i32 s7, 0
s_cbranch_scc1 L_amp''')
    a(f'L_pad{padn[0]}:\nL_end:\ns_endpgm')
    a(kdesc(KN+'_kernel', v.n))
    return hdr_ref + pad(a.text())

if __name__ == '__main__':
    open('k18.s', 'w').write(gen(None))
    open('k18_g.s', 'w').write(gen(None, forceglobal=True))
    open('k18_a.s', 'w').write(gen('ws'))
```

```python
import sys
from asmlib import *
from hz import pad

EPOCH=0; EX=0x2000; EH=0x4000; EQ=0x10000; EF=0x30000; DUMMY=0x4C000; EO=0x80000; ES=0x100000; WSZ=0x180000
LK=0; LV=65536; LW1=98304; LWO=131072; LWD=147456; MB=155648
XS=1088; QS=320; PS_=576; OS=320
XN=MB; LQ=MB+2304; LP=MB+3584; FL=MB+6144; LO=MB+6400; LH=MB+7168; MX=MB+7424; LS=MB+7488
F_W1F, F_S2, F_S3, F_S4, F_G, F_LD, F_MODE = [FL+16*i for i in range(7)]
LDS_TOTAL=163840
TAGINC=0x9E3779B9
BUD=1000000


DOC = """;
;
;   phase 1  128 rows x 128 columns of wq (j < 16: q head 4h + (j&3), row quarter j>>2) or of
;   w_down   64 rows x 64 columns (rows 64(j-4), columns 64h)         -> partial f
;   wo       128 rows x 64 columns (q head 4h + (j>>3), columns 64(j&7)) -> partial s
;
; Hand-offs between workgroups go through d_ws in self-validating granules: every 8/16-byte store
; carries this launch's tag (tag = word 0 of d_ws at entry + 0x9E3779B9; workgroup 0 stores the tag
; A producer uses ordinary stores only after it has read, from all 32 workgroups of its group, a
; tagged XCC id equal to its own (all its readers then share its L2); otherwise, and for every
"""

class V:
    def __init__(self, start=1): self.n = start; self.m = {}
    def __call__(self, name, cnt=1, align=1):
        if name in self.m: return self.m[name]
        self.n = (self.n + align-1)//align*align
        self.m[name] = self.n; self.n += cnt
        return self.m[name]
def vr(a, n): return f'v[{a}:{a+n-1}]'
NAMES = 'start,karg,x,w1,pub1,q,kready,sm,b1,pubo,ogot,b2,pubs,fin,#c1,#c2'.split(',')

def gen(diag=None, keep=None, NF=20, NFE=22, gE=8, wt=4, kf=1, vs=6, b2a=True, wb=None, g0=None, lp={'po_st':'sc0','pfs':'sc0','p1':'sc0'}, qsleep=0, early='', cprio=2, lprio=0, b0late=True, b3=True, osleep=0, fsleep=0, xsleep=4, spin_sleep=1,
        pre='', vsplit=True, forceglobal=False, pol='nt', amp=None, cpf=False, pads=False, tlb=False, skip=(), p1pol='sc1', expol='', wide=None, xtries=8):
    if amp: diag = 'amp'; keep = [amp[0], amp[1]]
    a = A()
    hdr_ref = open('cdna_kernels/%s.s.ref' % KN).read().split('; Override')[0]
    extra = f'; ts nwg=256 nwave=5 names={",".join(NAMES)}' if diag == 'ws' else ''
    a(header(f'; @launch grid=(256,1,1) block=(320,1,1) lds={LDS_TOTAL}', extra + ('\n' if extra else '') + DOC.rstrip('\n')))
    a(kstart(KN+'_kernel'))
    def T(i):
        if not diag: return
        if keep is None or NAMES[i] in keep or i == 0: a(ts(i))
        else: a(f's_mov_b32 s{TSB+2*i}, 0')
    def C(i):
        if diag and diag != 'amp': a(f's_sub_u32 s{TSB+2*i}, {BUD}, s68\ns_mov_b32 s68, {BUD}')
    def RB():
        if diag and diag != 'amp': a(f's_mov_b32 s68, {BUD}')
    lab = [0]; padn = [0]
    def spin(flag_v, off, tmp, n=4):
        lab[0] += 1; L = f'L_sp{lab[0]}'
        if n == 4:
            rd = f'''ds_read_b128 {vr(tmp,4)}, v{flag_v} offset:{off}
s_waitcnt lgkmcnt(0)
v_and_b32 v{tmp}, v{tmp}, v{tmp+1}
v_and_b32 v{tmp+2}, v{tmp+2}, v{tmp+3}
v_and_b32 v{tmp}, v{tmp}, v{tmp+2}'''
        else:
            rd = f'ds_read_b32 v{tmp}, v{flag_v} offset:{off}\ns_waitcnt lgkmcnt(0)'
        a(f'''{L}:
{rd}
v_cmp_ne_u32 vcc, 0, v{tmp}
s_cbranch_vccnz {L}_d
s_sleep {spin_sleep}
s_sub_u32 s68, s68, 1
s_cbranch_scc0 {L}
s_mov_b32 s68, 0
{L}_d:''')
    def PAD():
        if pads:
            a(f'L_pad{padn[0]}:\ns_cbranch_execz L_pad{padn[0]+1}'); padn[0] += 1
    def ppoll(items, srd, name, issued=False, tp=None, first=0, lo=False):
        def ld(it): return f'buffer_load_dwordx4 {vr(it[0],4)}, v{it[1]}, s[{srd}:{srd+3}], {it[2]} offen offset:{it[3]} sc1'
        if not issued:
            for it in items: a(ld(it))
        if first: a(f's_waitcnt vmcnt({first})\ns_branch L_{name}_c')
        a(f'L_{name}:\ns_waitcnt vmcnt(0)\nL_{name}_c:')
        for i, it in enumerate(items):
            m = 8+2*i; d = it[0]
            if it[4] == 'P':
                a(f'v_perm_b32 v{tp}, v{d+1}, v{d}, s24\nv_perm_b32 v{tp+1}, v{d+3}, v{d+2}, s25\nv_or_b32 v{tp}, v{tp}, v{tp+1}\nv_cmp_ne_u32 s[{m}:{m+1}], s60, v{tp}')
            else:
                a(f'v_cmp_ne_u32 s[{m}:{m+1}], s60, v{d+it[4][0]}')
                for t in it[4][1:]: a(f'v_cmp_ne_u32 s[{16+2*i}:{17+2*i}], s60, v{d+t}')
        for i, it in enumerate(items):
            if it[4] != 'P' and len(it[4]) > 1: a(f's_or_b64 s[{8+2*i}:{9+2*i}], s[{8+2*i}:{9+2*i}], s[{16+2*i}:{17+2*i}]')
        if len(items) == 4: a('s_or_b64 s[16:17], s[8:9], s[10:11]\ns_or_b64 s[18:19], s[12:13], s[14:15]\ns_or_b64 s[16:17], s[16:17], s[18:19]')
        elif len(items) == 2: a('s_or_b64 s[16:17], s[8:9], s[10:11]')
        elif items[0][4] == 'P' or len(items[0][4]) == 1: a('s_or_b64 s[8:9], s[8:9], s[8:9]')
        a(f's_cbranch_scc0 L_{name}_d')
        for i, it in enumerate(items):
            a(f's_mov_b64 exec, s[{8+2*i}:{9+2*i}]\ns_cbranch_execz L_{name}_s{i}\n{ld(it)}\nL_{name}_s{i}:')
        a(f'''{'s_mov_b32 exec_lo, -1' if lo else 's_mov_b64 exec, -1'}
s_sub_u32 s68, s68, 1
s_cbranch_scc0 L_{name}
s_mov_b32 s68, 0
s_waitcnt vmcnt(0)
L_{name}_d:''')
    def st2(text, name, gp='sc1'):
        a(f's_cbranch_scc1 L_{name}_l\n{text} {gp}\ns_branch L_{name}_e\nL_{name}_l:\n{text} {lp.get(name, str())}\nL_{name}_e:')

    T(0)
    if amp and amp[2] == 'clk': a('s_memtime s[100:101]')
    a(f'''s_load_dwordx16 s[8:23], s[0:1], 0
s_load_dwordx8 s[24:31], s[0:1], 64
v_lshrrev_b32 v1, 6, v0
s_lshr_b32 s6, s2, 3              ; j
v_readfirstlane_b32 s4, v1        ; wave
s_cmp_ge_u32 s6, 32
s_cbranch_scc1 L_end0
v_and_b32 v0, 63, v0
s_and_b32 s5, s2, 7               ; h
s_cmp_lg_u32 s4, 0
s_cbranch_scc1 L_disp
; K image: 256-byte rows, 16-byte chunk c of row r at slot c ^ (r & 15) (conflict-free ds_read_b128)
v_lshrrev_b32 v1, 4, v0
v_and_b32 v5, 15, v0
v_lshlrev_b32 v6, 8, v1
v_xor_b32 v7, v1, v5
v_lshl_add_u32 v12, v7, 4, v6
s_movk_i32 s3, 0x80
v_xor_b32 v13, 64, v12
v_xor_b32 v14, s3, v12
v_xor_b32 v15, s3, v13
s_lshr_b32 s3, s6, 4
s_lshl_b32 s34, s3, 26
s_lshl_b32 s3, s5, 3
s_or_b32 s3, s3, 7
s_lshl_b32 s3, s3, 20
s_add_u32 s34, s34, s3
s_and_b32 s3, s6, 15
s_lshl_b32 s3, s3, 16
s_add_u32 s34, s34, s3
s_lshl_b32 s38, 1, 16
s_mov_b32 s39, 0x20000
s_add_u32 s57, s5, s6
s_and_b32 s57, s57, 15
s_lshl_b32 s57, s57, 12
s_movk_i32 s61, 0x1000
s_mov_b32 m0, {LK}
s_mov_b32 s35, {kf-1}
s_waitcnt lgkmcnt(0)
s_add_u32 s36, s10, s34
s_addc_u32 s37, s11, 0''')
    if diag and keep and 'pub1' in keep: T(4)
    a('L_k0:')
    for k in range(4): a(f'buffer_load_dwordx4 v{12+k}, s[36:39], s57 offen offset:{1024*k} {pol} lds')
    a(f'''s_add_u32 s57, s57, s61
s_bitset0_b32 s57, 16
s_add_u32 m0, m0, s61
s_sub_u32 s35, s35, 1
s_cbranch_scc0 L_k0
s_branch L_loader2
L_end0:
s_endpgm
.p2align 8
L_disp:''')
    a('s_branch L_comp\nL_loader2:')
    if lprio: a(f's_setprio {lprio}')
    T(1)
    a(f'''; x -> LDS, clear the flag words, decode the phase-1 unit (s[40:43]; no unit: 0 records, zeros land)
s_mov_b32 m0, {LP}
s_mov_b32 s64, s8
s_mov_b32 s65, s9
s_movk_i32 s66, 0x800
s_mov_b32 s67, 0x20000
v_lshlrev_b32 v7, 4, v0
buffer_load_dwordx4 v7, s[64:67], 0 offen lds
buffer_load_dwordx4 v7, s[64:67], 0 offen offset:1024 lds
v_mov_b32 v8, 0
v_lshlrev_b32 v9, 2, v0
v_add_u32 v9, {FL}, v9
ds_write_b32 v9, v8
v_lshlrev_b32 v7, 1, v1
v_xor_b32 v7, v7, v5
v_lshlrev_b32 v7, 4, v7
s_lshl_b32 s3, s5, 4
s_add_u32 s3, s3, s6
s_sub_u32 s3, s3, 16
s_lshr_b32 s58, s3, 3
s_bfe_u32 s7, s3, 0x20001
s_mulk_i32 s7, 1792
s_add_u32 s58, s58, s7
s_bitcmp0_b32 s3, 0
s_cselect_b32 s40, s20, s22
s_cselect_b32 s41, s21, s23
s_lshl_b32 s33, s5, 2
s_and_b32 s7, s6, 3
s_add_u32 s33, s33, s7
s_lshr_b32 s7, s6, 2
s_lshl_b32 s7, s7, 12
s_add_u32 s33, s33, s7
s_movk_i32 s56, 3584
s_cmp_lt_u32 s6, 16
s_cselect_b32 s58, s33, s58
s_cselect_b32 s56, 0x2000, s56
s_cselect_b32 s40, s14, s40
s_cselect_b32 s41, s15, s41
s_cselect_b32 s3, 0, s3
s_cmp_lt_u32 s3, 112
s_cselect_b32 s58, s58, 0
s_cselect_b32 s42, s56, 0
s_cselect_b32 s7, 1, 0
s_lshl_b32 s58, s58, 8
s_mulk_i32 s42, 127
s_lshl_b32 s7, s7, 8
s_add_u32 s42, s42, s7
s_add_u32 s40, s40, s58
s_addc_u32 s41, s41, 0
s_mov_b32 s43, 0x20000
s_lshl_b32 s32, s56, 2
s_sub_u32 s33, s32, 0x400         ; 4*stride-1024
s_lshl_b32 s32, s32, 2            ; 16*stride
v_mad_u32_u24 v8, v1, s56, v7
v_xor_b32 v10, 0x80, v8
v_add_u32 v9, s33, v8
v_add_u32 v10, s33, v10
v_add_u32 v10, s33, v10
v_add_u32 v11, s33, v10
s_mov_b32 m0, {LW1}
s_mov_b32 s33, 0''')
    Wc = [NF-1]
    def group(vo, srd, so='s33', waits=(1,1,1,1)):
        for k in range(4):
            if waits[k]: a(f's_waitcnt vmcnt({Wc[0]})')
            a(f'buffer_load_dwordx4 v{vo[k]}, s[{srd}:{srd+3}], {so} offen offset:{1024*k} {pol} lds')
    def loop(n, vo, srd, step, wrap=False):
        if n <= 0: return
        lab[0] += 1; L = f'L_ld{lab[0]}'
        a(f's_mov_b32 s35, {n-1}\n{L}:')
        group(vo, srd)
        a(f's_add_u32 s33, s33, {step}')
        if wrap: a('s_bitset0_b32 s33, 16')
        a(f's_add_u32 m0, m0, s61\ns_sub_u32 s35, s35, 1\ns_cbranch_scc0 {L}')
    def lflag(off): a(f's_mov_b64 exec, 1\nds_write_b32 v24, v25 offset:{off-FL}\ns_mov_b64 exec, -1')
    ga = NF//4
    g0 = g0 or max(1, ga - kf)
    for g in range(g0):
        group((8, 9, 10, 11), 40, waits=(0, 0, 0, 0)); a('s_add_u32 s33, s33, s32\ns_add_u32 m0, m0, s61')
    a('s_waitcnt lgkmcnt(0)')
    if not b0late: a('s_barrier')
    a(f'''; descriptors for V s[44:47], wo s[48:51], w_down s[52:55]; tag base; x values and offsets of the final step
s_add_u32 s44, s12, s34
s_addc_u32 s45, s13, 0
s_mov_b32 s46, 0x10000
s_mov_b32 s47, 0x20000
s_load_dword s60, s[30:31], {EPOCH}
s_and_b32 s3, s6, 1
s_lshl_b32 s3, s3, 3
s_add_u32 s3, s3, s5
s_lshl_b32 s3, s3, 4
s_lshr_b32 s7, s6, 1
s_add_u32 s3, s3, s7
s_lshl_b32 s3, s3, 3
s_load_dwordx2 s[62:63], s[8:9], s3
s_mov_b32 s68, {BUD}
s_mov_b32 s10, 0x0c0c0400
s_mov_b32 s11, 0x04000c0c
v_add_u32 v16, v6, v7
v_xor_b32 v17, 0x80, v16
v_and_b32 v7, 1, v1
v_lshlrev_b32 v6, 2, v7
v_add_u32 v26, s3, v6
s_lshl_b32 s3, s5, 15
s_lshl_b32 s7, s6, 4
s_add_u32 s3, s3, s7
s_add_u32 s3, s3, {ES}
v_and_b32 v6, 31, v0
v_lshlrev_b32 v6, 9, v6
v_add_u32 v27, s3, v6
v_lshrrev_b32 v2, 3, v0
v_and_b32 v4, 7, v0
v_lshlrev_b32 v3, 1, v7
v_xor_b32 v3, v3, v4
v_lshlrev_b32 v3, 4, v3
v_lshl_add_u32 v20, v2, 10, v3
v_xor_b32 v21, 64, v20
v_add_u32 v21, 7168, v21
v_add_u32 v22, 14336, v20
v_add_u32 v23, 14336, v21
v_mov_b32 v24, {FL}
v_mov_b32 v25, 1
s_lshr_b32 s3, s6, 3
s_lshl_b32 s7, s5, 2
s_add_u32 s3, s3, s7
s_lshl_b32 s3, s3, 17
s_and_b32 s7, s6, 7
s_lshl_b32 s7, s7, 7
s_add_u32 s3, s3, s7
s_add_u32 s48, s16, s3
s_addc_u32 s49, s17, 0
s_mov_b32 s50, {127*1024+128}
s_mov_b32 s51, 0x20000
s_sub_u32 s3, s6, 4
s_cselect_b32 s3, 0, s3
s_cselect_b32 s54, 0, {63*1024+128}
s_lshl_b32 s3, s3, 16
s_lshl_b32 s7, s5, 7
s_add_u32 s3, s3, s7
s_add_u32 s52, s24, s3
s_addc_u32 s53, s25, 0
s_mov_b32 s55, 0x20000''')
    if b0late: a('s_barrier')
    W1v = (8, 9, 10, 11); Kv = (12, 13, 14, 15); Vv = (16, 16, 17, 17); W2v = (20, 21, 22, 23)
    loop(ga-g0, W1v, 40, 's32')
    a(f's_waitcnt vmcnt({4*ga})'); lflag(F_LD+12); T(5)
    loop(8-ga, W1v, 40, 's32')
    a(f's_mov_b32 s33, 0\ns_mov_b32 m0, {LWD}')
    loop(2, W2v, 52, '0x8000')
    a(f's_mov_b32 s33, s57\ns_mov_b32 m0, {LK+4096*kf}')
    loop(ga-2, Kv, 36, 's61', True)
    a(f's_waitcnt vmcnt({4*ga})'); lflag(F_LD); T(3)
    if wide:
        n, wn, allw = wide
        if not allw:
            a('s_cmp_lt_u32 s6, 16\ns_cbranch_scc0 L_wide')
            loop(n, Kv, 36, 's61', True)
            a('s_branch L_wide_e\nL_wide:')
        sv = Wc[0]; Wc[0] = wn-1
        loop(n, Kv, 36, 's61', True)
        Wc[0] = sv
        a('L_wide_e:')
        loop(16-kf-ga+2-n, Kv, 36, 's61', True)
    else: loop(16-kf-ga+2, Kv, 36, 's61', True)
    loop(ga, Vv, 44, 's61', True)
    a(f's_waitcnt vmcnt({4*ga})'); lflag(F_LD+4); T(6)
    loop(8-ga, Vv, 44, 's61', True)
    a('; the second half of V overwrites the phase-1 weights: wait until all four waves have read them')
    spin(24, F_W1F-FL, 28)
    if wt < 4:
        a(f's_mov_b32 s57, s33\ns_mov_b32 s33, 0\ns_mov_b32 m0, {LWO}')
        loop(4-wt, W2v, 48, '0x8000')
        a(f's_mov_b32 s33, s57\ns_mov_b32 m0, {LV+32768}')
    loop(gE-8, Vv, 44, 's61', True)
    Wc[0] = NFE-1
    loop(16-gE, Vv, 44, 's61', True)
    nW2 = 4*wt
    need = 64 - 8*vs
    done = [not vsplit]
    def vflag(cnt, last=False):
        if not done[0] and (cnt + need >= NFE or last):
            a(f's_waitcnt vmcnt({cnt+need})'); lflag(F_LD+8); done[0] = True
    vflag(0, wt == 0)
    a(f's_mov_b32 s33, {0x8000*(4-wt)}\ns_mov_b32 m0, {LWO+4096*(4-wt)}')
    cnt = 0
    for g in range(wt):
        group(W2v, 48, waits=[1 if cnt+k < NFE else 0 for k in range(4)]); cnt += 4
        vflag(cnt, g == wt-1)
        if g < wt-1: a('s_add_u32 s33, s33, 0x8000\ns_add_u32 m0, m0, s61')
    T(7)
    a(f's_waitcnt vmcnt({nW2})')
    T(2)
    a('s_barrier                          ; B1: V landed')
    T(8)
    G = 32
    a(f'''s_add_u32 s60, s60, {TAGINC}
s_mov_b32 s64, s30
s_mov_b32 s65, s31
s_mov_b32 s66, {WSZ}
s_mov_b32 s67, 0x20000
s_mov_b32 s34, 0x4000
s_mov_b32 s56, s26
s_mov_b32 s57, s27
s_movk_i32 s58, 0x800
s_mov_b32 s59, 0x20000
s_mov_b32 s24, s10
s_mov_b32 s25, s11
v_and_b32 v5, 1, v1
v_cmp_eq_u32 vcc, 1, v5
v_mov_b32 v2, s62
v_mov_b32 v3, s63
v_cndmask_b32 v2, v2, v3, vcc
v_lshlrev_b32 v28, 16, v2
v_and_b32 v29, 0xffff0000, v2
s_setprio 3
s_waitcnt vmcnt(0)''')
    T(10)
    if b2a: a('s_barrier')
    a('s_barrier')
    T(11)
    def red32(r):
        for k in range(4): a(f'v_and_b32 v{r+k}, 0xffffff00, v{r+k}')
        a(f'''v_permlane16_swap_b32 v{r}, v{r+2}
v_permlane16_swap_b32 v{r+1}, v{r+3}
v_pk_add_f32 {vr(r,2)}, {vr(r,2)}, {vr(r+2,2)}''')
        for k in (8, 4, 2, 1):
            for e in range(2): a(f'v_add_f32_dpp v{r+e}, v{r+e}, v{r+e} row_ror:{k} row_mask:0xf bank_mask:0xf')
        a(f'v_cvt_pk_bf16_f32 v{r+1}, v{r}, v{r+1}\nv_lshlrev_b32 v{r}, 16, v{r+1}\nv_and_b32 v{r+1}, 0xffff0000, v{r+1}')
    a('; final step: lane p < 32 reads producer p.  f partials (same group) first; the s partials come from\n; all groups and are first read once this workgroup\'s own write-through stores have landed (B3): a\n; read that comes earlier caches the old line and makes the hand-off slower')
    PAD()
    a(f's_mov_b32 exec_hi, 0\nbuffer_load_dwordx4 {vr(G+4,4)}, v27, s[64:67], s34 offen sc1')
    if b3: a('s_barrier')
    if fsleep: a(f's_sleep {fsleep}')
    a(f'buffer_load_dwordx4 {vr(G,4)}, v27, s[64:67], 0 offen sc1')
    ppoll([(G+4, 27, 's34', 0, 'P')], 64, 'pf', issued=True, first=1, tp=G+8, lo=True)
    red32(G+4)
    a(f'''v_mul_f32 v{G+6}, 0xbfb8aa3b, v{G+4}
v_mul_f32 v{G+7}, 0xbfb8aa3b, v{G+5}
v_exp_f32 v{G+6}, v{G+6}
v_exp_f32 v{G+7}, v{G+7}
v_add_f32 v{G+6}, 1.0, v{G+6}
v_add_f32 v{G+7}, 1.0, v{G+7}
v_rcp_f32 v{G+6}, v{G+6}
v_rcp_f32 v{G+7}, v{G+7}
v_pk_mul_f32 {vr(G+4,2)}, {vr(G+4,2)}, {vr(G+6,2)}
v_cvt_pk_bf16_f32 v{G+5}, v{G+4}, v{G+5}
v_lshlrev_b32 v{G+4}, 16, v{G+5}
v_and_b32 v{G+5}, 0xffff0000, v{G+5}''')
    PAD()
    RB()
    ppoll([(G, 27, '0', 0, 'P')], 64, 'ps', issued=True, tp=G+8, lo=True)
    red32(G)
    a(f'''v_pk_mul_f32 {vr(G,2)}, {vr(G,2)}, {vr(G+4,2)}
v_cvt_pk_bf16_f32 v{G+1}, v{G}, v{G+1}
v_lshlrev_b32 v{G}, 16, v{G+1}
v_and_b32 v{G+1}, 0xffff0000, v{G+1}
v_pk_add_f32 {vr(G,2)}, {vr(G,2)}, v[28:29]
s_mov_b32 exec_lo, 0x10001
v_cvt_pk_bf16_f32 v{G}, v{G}, v{G+1}
buffer_store_dword v{G}, v26, s[56:59], 0 offen''')
    PAD()
    a(f'''; every wave of every workgroup read word 0 before the results summed above were produced
s_cmp_lg_u32 s2, 0
s_cbranch_scc1 L_lend
s_mov_b64 exec, 1
v_mov_b32 v1, {EPOCH}
v_mov_b32 v2, s60
buffer_store_dword v2, v1, s[64:67], 0 offen
L_lend:''')
    if diag:
        T(13); C(15)
        for i in ((9, 12) if keep and 'pub1' in keep else (4, 9, 12)): T(i)
        if diag != 'amp': a(f's_mov_b32 s{TSB+28}, 0')
        a('s_branch L_fin')
    else: a('s_endpgm')
    v = V(8)
    vFL = v('FL'); vFLW = v('FLW'); vONE = v('ONE')
    tmp = v('tmp', 8, 4); X = v('X', 8, 4)
    def setflag(off): a(f's_mov_b64 exec, 1\nds_write_b32 v{vFLW}, v{vONE} offset:{off-FL}\ns_mov_b64 exec, -1')
    a(f'''; =========================== compute waves (w = 0..3) ===========================
L_comp:
s_barrier
s_setprio {cprio}
s_sub_u32 s4, s4, 1               ; w
s_mov_b32 s46, {WSZ}
s_mov_b32 s47, 0x20000
s_waitcnt lgkmcnt(0)
s_load_dword s60, s[30:31], {EPOCH}
s_mov_b32 s44, s30
s_mov_b32 s45, s31
s_mov_b32 s68, {BUD}
s_getreg_b32 s63, hwreg(HW_REG_XCC_ID)
s_mov_b32 s24, 0x0c0c0400
s_mov_b32 s25, 0x04000c0c
s_mov_b32 s20, 0x07060500
s_mov_b32 s21, 0x07060501
s_mov_b32 s22, 0x07060502
s_mov_b32 s23, 0x07060503
s_cmp_lt_u32 s6, 16
s_cbranch_scc0 L_ffnunit
s_lshr_b32 s57, s6, 2
s_lshl_b32 s59, s5, 5
s_add_u32 s59, s59, s6
s_lshl_b32 s59, s59, 9
s_add_u32 s59, s59, {EQ}
s_movk_i32 s61, 0x2000
s_mov_b32 s58, -1
s_branch L_unitdone
L_ffnunit:
s_lshl_b32 s3, s5, 4
s_add_u32 s3, s3, s6
s_sub_u32 s3, s3, 16
s_bfe_u32 s57, s3, 0x20001
s_and_b32 s59, s3, 1
s_lshl_b32 s59, s59, 2
s_add_u32 s59, s59, s57
s_andn2_b32 s7, s3, 7
s_add_u32 s59, s59, s7
s_lshl_b32 s59, s59, 10
s_add_u32 s59, s59, {EF}
s_movk_i32 s61, 512
s_mov_b32 s58, s3
s_cmp_lt_u32 s3, 112
s_cbranch_scc1 L_unitdone
s_mov_b32 s57, 0
s_mov_b32 s59, {DUMMY}
s_mov_b32 s58, -1
L_unitdone:''')
    T(1)
    vTR = v('TR'); vTV = v('TV', 2); vKA = v('KA', 4); vAX = v('AX'); vAO = v('AO'); vAH = v('AH')
    vQB = v('QB'); vPB = v('PB'); vP1 = v('P1'); vGQ = v('GQ'); vGH = v('GH'); vPO = v('PO'); vGO = v('GO')
    vPS = v('PS'); vQW = v('QW'); vPW = v('PW'); vMX = v('MXa'); vHW = v('HW'); vOW = v('OW'); vGR = v('GR'); vPH = v('PH')
    a(f'''v_mov_b32 v{vFL}, {FL}
v_lshrrev_b32 v{tmp+6}, 5, v0
v_and_b32 v5, 31, v0
v_lshlrev_b32 v2, 10, v{tmp+6}
v_lshl_add_u32 v2, v5, 5, v2
v_add_u32 v2, {LP}, v2
s_lshl_b32 s3, s57, 8
v_lshlrev_b32 v1, 10, v{tmp+6}
v_lshl_add_u32 v1, v5, 3, v1
v_add_u32 v1, s3, v1
v_add_u32 v1, {LP}, v1            ; raw x: this unit's rows, 4 values per lane
v_mul_u32_u24 v3, {XS}, v{tmp+6}
v_lshl_add_u32 v3, v5, 3, v3
v_add_u32 v3, {XN}, v3            ; normalised rows''')
    F = v('F', 16, 4); D = v('Dd', 16, 4)
    spin(vFL, F_LD+12-FL, tmp, 1)
    a(f'''s_add_u32 s60, s60, {TAGINC}
s_and_b32 s63, s63, 15
s_cmp_lg_u32 s4, 0
s_cbranch_scc1 L_nox
s_lshl_b32 s3, s5, 5
s_add_u32 s3, s3, s6
s_lshl_b32 s3, s3, 3
s_add_u32 s3, s3, {EX}
v_mov_b32 v4, s3
v_mov_b32 v6, s63
v_mov_b32 v7, s60
s_mov_b64 exec, 1
buffer_store_dwordx2 v[6:7], v4, s[44:47], 0 offen sc0
s_mov_b64 exec, -1
L_nox:''')
    a(f'ds_read_b128 {vr(X,4)}, v2\nds_read_b128 {vr(X+4,4)}, v2 offset:16\nds_read_b64 {vr(tmp+4,2)}, v1\ns_waitcnt lgkmcnt(1)')
    T(2)
    for i in range(8):
        a(f'v_lshlrev_b32 v{F+2*i}, 16, v{X+i}\nv_and_b32 v{F+2*i+1}, 0xffff0000, v{X+i}')
    def red32l(r, t):
        a(f'v_mov_b32 v{t}, v{r}\nv_permlane16_swap_b32 v{r}, v{t}\nv_add_f32 v{r}, v{r}, v{t}')
        for k in (8, 4, 2, 1): a(f'v_add_f32_dpp v{r}, v{r}, v{r} row_ror:{k} row_mask:0xf bank_mask:0xf')
    for i in range(4): a(f'v_pk_add_f32 {vr(D+2*i,2)}, {vr(F+4*i,2)}, {vr(F+4*i+2,2)}')
    a(f'''v_pk_add_f32 {vr(D,2)}, {vr(D,2)}, {vr(D+2,2)}
v_pk_add_f32 {vr(D+4,2)}, {vr(D+4,2)}, {vr(D+6,2)}
v_pk_add_f32 {vr(D,2)}, {vr(D,2)}, {vr(D+4,2)}
v_add_f32 v{tmp}, v{D}, v{D+1}''')
    red32l(tmp, tmp+1)
    a(f'v_mul_f32 v{tmp}, 0xbb000000, v{tmp}          ; -mean')
    for i in range(8): a(f'v_pk_add_f32 {vr(F+2*i,2)}, {vr(F+2*i,2)}, {vr(tmp,2)} op_sel_hi:[1,0]')
    a(f'v_pk_mul_f32 {vr(D,2)}, {vr(F,2)}, {vr(F,2)}\nv_pk_mul_f32 {vr(D+2,2)}, {vr(F+2,2)}, {vr(F+2,2)}')
    for i in range(2, 8): a(f'v_pk_fma_f32 {vr(D+2*(i&1),2)}, {vr(F+2*i,2)}, {vr(F+2*i,2)}, {vr(D+2*(i&1),2)}')
    a(f'''v_pk_add_f32 {vr(D,2)}, {vr(D,2)}, {vr(D+2,2)}
v_cvt_pk_bf16_f32 v{tmp}, v{tmp}, v{tmp}
v_add_f32 v{tmp+2}, v{D}, v{D+1}
v_lshlrev_b32 v{tmp}, 16, v{tmp}          ; -bf16(mean)''')
    red32l(tmp+2, tmp+3)
    a(f'''v_mul_f32 v{tmp+2}, 0x3b000000, v{tmp+2}
s_waitcnt lgkmcnt(0)
v_cvt_pk_bf16_f32 v{tmp+2}, v{tmp+2}, v{tmp+2}
v_lshlrev_b32 v{F}, 16, v{tmp+4}
v_lshlrev_b32 v{tmp+2}, 16, v{tmp+2}
v_and_b32 v{F+1}, 0xffff0000, v{tmp+4}
v_add_f32 v{tmp+2}, 0x3727c5ac, v{tmp+2}
v_lshlrev_b32 v{F+2}, 16, v{tmp+5}
v_cvt_pk_bf16_f32 v{tmp+2}, v{tmp+2}, v{tmp+2}
v_and_b32 v{F+3}, 0xffff0000, v{tmp+5}
v_lshlrev_b32 v{tmp+2}, 16, v{tmp+2}
v_sqrt_f32 v{tmp+2}, v{tmp+2}
v_pk_add_f32 {vr(F,2)}, {vr(F,2)}, {vr(tmp,2)} op_sel_hi:[1,0]
v_pk_add_f32 {vr(F+2,2)}, {vr(F+2,2)}, {vr(tmp,2)} op_sel_hi:[1,0]
v_cvt_pk_bf16_f32 v{tmp+2}, v{tmp+2}, v{tmp+2}
v_cvt_pk_bf16_f32 v{tmp+4}, v{F}, v{F+1}
v_lshlrev_b32 v{tmp+2}, 16, v{tmp+2}
v_cvt_pk_bf16_f32 v{tmp+5}, v{F+2}, v{F+3}
v_rcp_f32 v{tmp+2}, v{tmp+2}
v_lshlrev_b32 v{F}, 16, v{tmp+4}
v_and_b32 v{F+1}, 0xffff0000, v{tmp+4}
v_lshlrev_b32 v{F+2}, 16, v{tmp+5}
v_and_b32 v{F+3}, 0xffff0000, v{tmp+5}
v_pk_mul_f32 {vr(F,2)}, {vr(F,2)}, {vr(tmp+2,2)} op_sel_hi:[1,0]
v_pk_mul_f32 {vr(F+2,2)}, {vr(F+2,2)}, {vr(tmp+2,2)} op_sel_hi:[1,0]
v_cvt_pk_bf16_f32 v{tmp+4}, v{F}, v{F+1}
v_cvt_pk_bf16_f32 v{tmp+5}, v{F+2}, v{F+3}
ds_write_b64 v3, {vr(tmp+4,2)}''')
    BA = v('BA', 64, 4); BB = v('BB', 64, 4); ACC = v('ACC', 8, 4)
    G = F
    a(f'''s_lshl_b32 s3, s4, 2
s_add_u32 s3, s3, {FL}
v_mov_b32 v{vFLW}, s3
v_mov_b32 v{vONE}, 1
v_lshrrev_b32 v1, 2, v0           ; l>>2
v_and_b32 v2, 3, v0               ; l&3
v_lshrrev_b32 v3, 4, v0           ; kg
v_and_b32 v7, 3, v1
v_lshl_add_u32 v7, v3, 3, v7
s_lshl_b32 s3, s4, 1
v_and_b32 v5, 7, v1
v_xor_b32 v5, s3, v5
v_lshlrev_b32 v6, 8, v7
v_lshl_add_u32 v6, v2, 3, v6
v_add_u32 v6, {LV}, v6
v_lshl_add_u32 v{vTV}, v5, 5, v6
v_xor_b32 v{vTV+1}, 32, v{vTV}
v_lshlrev_b32 v6, 4, v3           ; kg*16
v_and_b32 v4, 1, v0               ; l&1
v_mul_u32_u24 v5, {XS}, v4
v_add_u32 v5, v5, v6
v_add_u32 v{vAX}, {XN}, v5
s_lshl_b32 s3, s4, 7
s_add_u32 s3, s3, s59
v_mul_u32_u24 v5, s61, v4
v_add3_u32 v5, s3, v5, v6
v_bfe_u32 v4, v0, 1, 1
v_lshl_add_u32 v{vP1}, v4, 6, v5
v_cmp_eq_u32 s[64:65], 1, v4''')
    for ks in range(4): a(f'ds_read_b128 {vr(BB+4*ks,4)}, v{vAX} offset:{64*ks}')
    for i in range(8): a(f'v_mov_b32 v{ACC+i}, 0')
    a(f'v_mov_b32 v{tmp+7}, s60')
    spin(vFL, F_LD-FL, tmp, 1)
    T(3)
    for ks in range(4):
        for u in range(2):
            r = BA+8*ks+4*u
            a(f'ds_read_b64_tr_b16 {vr(r,2)}, v{vTV+u} offset:{LW1-LV+8192*ks}\nds_read_b64_tr_b16 {vr(r+2,2)}, v{vTV+u} offset:{LW1-LV+8192*ks+1024}')
    for i in range(8):
        ks, u = i >> 1, i & 1
        a(f's_waitcnt lgkmcnt({14-2*i})')
        a(f'v_mfma_f32_16x16x32_bf16 {vr(ACC+4*u,4)}, {vr(BA+4*i,4)}, {vr(BB+4*ks,4)}, {vr(ACC+4*u,4)}')
    setflag(F_W1F)
    for i in range(4): a(f'v_cndmask_b32 v{ACC+i}, v{ACC+i}, v{ACC+4+i}, s[64:65]')
    for i in range(4): a(f'v_add_u32 v{ACC+i}, 0x80, v{ACC+i}')
    for i in range(4): a(f'v_perm_b32 v{ACC+i}, v{ACC+i}, v{tmp+7}, s{20+i}')
    a(f's_mov_b32 exec_lo, 0x000f000f\ns_mov_b32 exec_hi, 0x000f000f\nbuffer_store_dwordx4 {vr(ACC,4)}, v{vP1}, s[44:47], 0 offen sc0')
    vGX = v('GX'); XG = v('XG', 2, 2)
    xld = f'buffer_load_dwordx2 {vr(XG,2)}, v{vGX}, s[44:47], 0 offen sc1'
    a(f'''s_mov_b64 exec, -1
s_lshl_b32 s3, s5, 8
s_add_u32 s3, s3, {EX}
v_and_b32 v4, 31, v0
v_lshlrev_b32 v4, 3, v4
v_add_u32 v{vGX}, s3, v4
{xld}''')
    T(4)
    a(f'''v_lshrrev_b32 v1, 2, v0           ; l>>2
v_and_b32 v2, 3, v0               ; l&3
v_lshrrev_b32 v3, 4, v0           ; kg
v_and_b32 v4, 15, v0              ; n
v_bfe_u32 v5, v0, 3, 2
v_xor_b32 v5, s4, v5
v_lshlrev_b32 v5, 5, v5
v_and_b32 v7, 3, v1
v_lshl_add_u32 v7, v3, 3, v7
v_lshl_add_u32 v5, v7, 7, v5
v_lshl_add_u32 v5, v2, 3, v5
v_add_u32 v{vTR}, {LWO}, v5
s_lshl_b32 s3, s4, 14
v_lshlrev_b32 v6, 8, v4
v_add_u32 v6, s3, v6
v_xor_b32 v5, v3, v4
v_lshl_add_u32 v{vKA}, v5, 4, v6
v_xor_b32 v{vKA+1}, 64, v{vKA}
v_xor_b32 v{vKA+2}, 0x80, v{vKA}
v_xor_b32 v{vKA+3}, 0xc0, v{vKA}
v_lshlrev_b32 v6, 4, v3           ; kg*16
v_and_b32 v{tmp+3}, 1, v0         ; l&1
v_and_b32 v5, 1, v1               ; (l>>2)&1
v_mul_u32_u24 v7, {OS}, v{tmp+3}
v_add_u32 v7, v7, v6
v_add_u32 v{vAO}, {LO}, v7
v_lshl_add_u32 v7, v{tmp+3}, 7, v6
v_add_u32 v{vAH}, {LH}, v7
v_mul_u32_u24 v7, {QS}, v2
v_add_u32 v7, v7, v6
v_add_u32 v{vQB}, {LQ}, v7
v_mul_u32_u24 v7, {PS_}, v2
v_add_u32 v7, v7, v6
v_add_u32 v{vPB}, {LP}, v7
v_and_b32 v{tmp+1}, 1, v3         ; kg&1
s_lshr_b32 s3, s58, 3
s_lshl_b32 s3, s3, 13
s_and_b32 s7, s58, 7
s_lshl_b32 s7, s7, 6
s_add_u32 s3, s3, s7
s_add_u32 s3, s3, {EF}
v_lshlrev_b32 v7, 9, v1
v_lshl_add_u32 v7, v2, 4, v7
v_add_u32 v{vGR}, s3, v7
s_lshl_b32 s3, s58, 7
s_add_u32 s3, s3, {EH}
v_lshlrev_b32 v7, 6, v5
v_lshl_add_u32 v7, v2, 4, v7
v_lshl_add_u32 v7, v{tmp+1}, 3, v7
v_add_u32 v{vPH}, s3, v7
s_sub_u32 s7, s6, 4
s_cselect_b32 s7, 0, s7
s_lshl_b32 s3, s7, 9
s_add_u32 s3, s3, {EH}
v_lshlrev_b32 v7, 3, v0
v_add_u32 v{vGH}, s3, v7
v_bfe_u32 v7, v0, 3, 1
v_lshlrev_b32 v7, 7, v7
v_lshl_add_u32 v7, v3, 5, v7
v_and_b32 v{tmp+5}, 7, v0
v_lshl_add_u32 v7, v{tmp+5}, 2, v7
v_add_u32 v{vHW}, {LH}, v7
s_lshr_b32 s7, s6, 4
s_lshl_b32 s3, s5, 1
s_add_u32 s3, s3, s7
s_lshl_b32 s3, s3, 4
s_add_u32 s3, s3, s4
s_lshl_b32 s3, s3, 9
s_add_u32 s3, s3, {EQ}
v_lshrrev_b32 v{tmp+2}, 5, v0     ; l>>5
v_and_b32 v5, 31, v0
v_lshlrev_b32 v7, 11, v{tmp+2}
v_lshl_add_u32 v7, v5, 4, v7
v_add_u32 v{vGQ}, s3, v7
s_mul_i32 s3, s4, {QS}
s_add_u32 s3, s3, {LQ}
v_lshlrev_b32 v7, 2, v{tmp+2}
v_lshl_add_u32 v7, v5, 3, v7
v_add_u32 v{vQW}, s3, v7
v_bfe_u32 v6, v0, 3, 1
v_and_b32 v7, 7, v0
s_lshr_b32 s3, s6, 3
s_lshl_b32 s7, s5, 2
s_add_u32 s66, s3, s7             ; hq
s_lshl_b32 s3, s66, 14
s_lshl_b32 s7, s4, 7
s_add_u32 s3, s3, s7
s_add_u32 s3, s3, {EO}
v_lshlrev_b32 v5, 13, v6
v_lshl_add_u32 v5, v3, 11, v5
v_lshl_add_u32 v5, v7, 4, v5
v_add_u32 v{vGO}, s3, v5
s_lshl_b32 s3, s4, 6
s_add_u32 s3, s3, {LO}
v_mul_u32_u24 v5, {OS}, v6
v_lshl_add_u32 v5, v7, 3, v5
v_lshl_add_u32 v5, v{tmp+1}, 2, v5
v_lshl_add_u32 v5, v{tmp+2}, 1, v5
v_add_u32 v{vOW}, s3, v5
; o publish
s_lshl_b32 s3, s5, 16
s_lshl_b32 s7, s6, 9
s_add_u32 s3, s3, s7
s_lshl_b32 s7, s4, 7
s_add_u32 s3, s3, s7
s_add_u32 s3, s3, {EO}
v_lshlrev_b32 v5, 14, v2
v_and_b32 v6, 1, v1
v_lshl_add_u32 v5, v6, 6, v5
v_lshl_add_u32 v5, v3, 4, v5
v_add_u32 v{vPO}, s3, v5
s_lshl_b32 s3, s4, 7
s_add_u32 s3, s3, {LP}
v_mul_u32_u24 v5, {PS_}, v2
v_and_b32 v6, 3, v1
v_lshl_add_u32 v5, v6, 5, v5
v_lshl_add_u32 v5, v3, 3, v5
v_add_u32 v{vPW}, s3, v5
v_lshlrev_b32 v5, 2, v2
v_add_u32 v{vMX}, {MX}, v5
s_and_b32 s3, s6, 7
s_lshl_b32 s3, s3, 6
s_add_u32 s3, s3, s66
s_lshl_b32 s66, s3, 9             ; s slot
s_add_u32 s7, s6, 28
s_and_b32 s7, s7, 31
s_lshl_b32 s67, s5, 6
s_add_u32 s7, s7, s67
s_add_u32 s7, s7, 32
s_lshl_b32 s67, s7, 9             ; f slot
s_lshl_b32 s3, s4, 7
s_add_u32 s3, s3, {ES}
v_lshlrev_b32 v5, 5, v3
v_lshl_add_u32 v5, v{tmp+3}, 4, v5
v_add_u32 v{vPS}, s3, v5''')
    for i in range(64): a(f'v_mov_b32 v{BB+i}, 0')
    RB()
    a('s_movk_i32 s34, 0x1000')
    HG = v('HG', 4, 4)
    a(f's_cmp_lg_u32 s4, 0\ns_cselect_b32 s58, -1, s58\ns_cmp_lt_i32 s58, 0\ns_cbranch_scc1 L_nored0\nbuffer_load_dwordx4 {vr(HG,4)}, v{vGR}, s[44:47], 0 offen sc1\nL_nored0:')
    qit = [(G, vGQ, '0', 0, 'P'), (G+4, vGQ, 's34', 0, 'P')]
    for it in qit: a(f'buffer_load_dwordx4 {vr(it[0],4)}, v{it[1]}, s[44:47], {it[2]} offen sc1')
    a(f'''s_mov_b32 s7, {xtries}
s_waitcnt vmcnt(2)
L_px:
v_cmp_ne_u32 vcc, s60, v{XG+1}
s_cbranch_vccz L_px_d
{xld}
s_sub_u32 s7, s7, 1
s_waitcnt vmcnt(0)
s_cbranch_scc0 L_px
s_mov_b32 s63, -1
L_px_d:
v_cmp_ne_u32 vcc, s63, v{XG}
s_cmp_eq_u64 vcc, 0
s_cselect_b32 s62, {1 if forceglobal else 0}, 1
s_cmp_eq_u32 s62, 0
s_cbranch_scc1 L_p1done
s_mov_b32 exec_lo, 0x000f000f
s_mov_b32 exec_hi, 0x000f000f
buffer_store_dwordx4 {vr(ACC,4)}, v{vP1}, s[44:47], 0 offen sc1
s_mov_b64 exec, -1
L_p1done:''')
    ppoll(qit, 44, 'pq', issued=True, tp=tmp)
    T(5)
    if diag and keep and '#q' in keep: C(14)
    for i in range(8): a(f'v_and_b32 v{G+i}, 0xffffff00, v{G+i}')
    a(f'''v_pk_add_f32 {vr(G,2)}, {vr(G,2)}, {vr(G+4,2)}
v_pk_add_f32 {vr(G+2,2)}, {vr(G+2,2)}, {vr(G+6,2)}
v_permlane32_swap_b32 v{G}, v{G+2}
v_permlane32_swap_b32 v{G+1}, v{G+3}
v_pk_add_f32 {vr(G,2)}, {vr(G,2)}, {vr(G+2,2)}
v_cvt_pk_bf16_f32 v{G}, v{G}, v{G+1}
ds_write_b32 v{vQW}, v{G}
s_waitcnt lgkmcnt(0)''')
    setflag(F_S2)
    a('; ---- h = silu(gate) * up for 16 columns, published for all groups')
    a('s_cmp_lt_i32 s58, 0\ns_cbranch_scc1 L_nored')
    ppoll([(HG, vGR, '0', 0, 'P')], 44, 'pr', issued=True, tp=tmp)
    for i in range(4): a(f'v_and_b32 v{HG+i}, 0xffffff00, v{HG+i}')
    for i in range(4): a(f'v_add_f32_dpp v{HG+i}, v{HG+i}, v{HG+i} row_ror:8 row_mask:0xf bank_mask:0xf')
    a(f'''v_permlane16_swap_b32 v{HG}, v{HG+2}
v_permlane16_swap_b32 v{HG+1}, v{HG+3}
v_pk_add_f32 {vr(HG,2)}, {vr(HG,2)}, {vr(HG+2,2)}
v_cvt_pk_bf16_f32 v{HG}, v{HG}, v{HG+1}
v_mov_b32 v{HG+1}, v{HG}
v_permlane32_swap_b32 v{HG}, v{HG+1}
v_lshlrev_b32 v{tmp}, 16, v{HG}
v_and_b32 v{tmp+1}, 0xffff0000, v{HG}
v_mul_f32 v{tmp+2}, 0xbfb8aa3b, v{tmp}
v_mul_f32 v{tmp+3}, 0xbfb8aa3b, v{tmp+1}
v_exp_f32 v{tmp+2}, v{tmp+2}
v_exp_f32 v{tmp+3}, v{tmp+3}
v_lshlrev_b32 v{HG+2}, 16, v{HG+1}
v_add_f32 v{tmp+2}, 1.0, v{tmp+2}
v_add_f32 v{tmp+3}, 1.0, v{tmp+3}
v_rcp_f32 v{tmp+2}, v{tmp+2}
v_rcp_f32 v{tmp+3}, v{tmp+3}
v_and_b32 v{HG+3}, 0xffff0000, v{HG+1}
v_mul_f32 v{tmp}, v{tmp}, v{tmp+2}
v_mul_f32 v{tmp+1}, v{tmp+1}, v{tmp+3}
v_cvt_pk_bf16_f32 v{tmp}, v{tmp}, v{tmp+1}
v_and_b32 v{tmp+1}, 0xffff0000, v{tmp}
v_lshlrev_b32 v{tmp}, 16, v{tmp}
v_mul_f32 v{tmp}, v{tmp}, v{HG+2}
v_mul_f32 v{tmp+1}, v{tmp+1}, v{HG+3}
v_cvt_pk_bf16_f32 v{tmp}, v{tmp}, v{tmp+1}
v_mov_b32 v{tmp+1}, s60
s_mov_b32 exec_lo, 0x00ff00ff
s_mov_b32 exec_hi, 0
buffer_store_dwordx2 {vr(tmp,2)}, v{vPH}, s[44:47], 0 offen sc1
s_mov_b64 exec, -1
L_nored:''')
    spin(vFL, F_S2-FL, tmp)
    for t in range(4):
        a(f's_mov_b32 exec_lo, {0x000f000f << (4*t)}\ns_mov_b32 exec_hi, {0x000f000f << (4*t)}')
        for ks in range(4): a(f'ds_read_b128 {vr(BB+16*t+4*ks,4)}, v{vQB} offset:{64*ks}')
    a('s_mov_b64 exec, -1')
    for i in range(4): a(f'v_mov_b32 v{ACC+i}, 0')
    spin(vFL, F_LD+4-FL, tmp, 1)
    T(6)
    for t in range(4):
        for ks in range(4): a(f'ds_read_b128 {vr(BA+16*t+4*ks,4)}, v{vKA+ks} offset:{4096*t}')
    for i in range(16):
        a(f's_waitcnt lgkmcnt({15-i})')
        a(f'v_mfma_f32_16x16x32_bf16 {vr(ACC,4)}, {vr(BA+4*i,4)}, {vr(BB+4*i,4)}, {vr(ACC,4)}')
    S = v('S', 4, 4); M = v('M'); L_ = v('L')
    def rne4(src, dst, t):
        a(f'''v_cvt_pk_bf16_f32 v{t}, v{src}, v{src+1}
v_cvt_pk_bf16_f32 v{t+1}, v{src+2}, v{src+3}
v_lshlrev_b32 v{dst}, 16, v{t}
v_and_b32 v{dst+1}, 0xffff0000, v{t}
v_lshlrev_b32 v{dst+2}, 16, v{t+1}
v_and_b32 v{dst+3}, 0xffff0000, v{t+1}''')
    hld = f'buffer_load_dwordx2 {vr(HG,2)}, v{vGH}, s[44:47], 0 offen sc1'
    for i in range(16, 24): a(f'v_mov_b32 v{BB+i}, 0')
    rne4(ACC, S, tmp)
    for i in range(4): a(f'v_mul_f32 v{S+i}, 0x3db504f3, v{S+i}')
    rne4(S, S, tmp)
    def xl(op, r, t):
        a(f'''{op}_dpp v{r}, v{r}, v{r} row_ror:4 row_mask:0xf bank_mask:0xf
{op}_dpp v{r}, v{r}, v{r} row_ror:8 row_mask:0xf bank_mask:0xf
v_mov_b32 v{t}, v{r}
v_permlane16_swap_b32 v{r}, v{t}
{op} v{r}, v{r}, v{t}
v_mov_b32 v{t}, v{r}
v_permlane32_swap_b32 v{r}, v{t}
{op} v{r}, v{r}, v{t}''')
    a(f'v_max3_f32 v{M}, v{S}, v{S+1}, v{S+2}\nv_max_f32 v{M}, v{M}, v{S+3}')
    xl('v_max_f32', M, tmp)
    a(f'''s_lshl_b32 s3, s4, 4
v_add_u32 v{tmp+4}, s3, v{vMX}
s_mov_b64 exec, 15
ds_write_b32 v{tmp+4}, v{M}
s_mov_b64 exec, -1
s_waitcnt lgkmcnt(0)''')
    setflag(F_S3)
    for i in range(24, 64): a(f'v_mov_b32 v{BB+i}, 0')
    spin(vFL, F_S3-FL, tmp)
    a(f'''ds_read2_b32 {vr(tmp,2)}, v{vMX} offset0:0 offset1:4
ds_read2_b32 {vr(tmp+2,2)}, v{vMX} offset0:8 offset1:12
s_waitcnt lgkmcnt(0)
v_max3_f32 v{M}, v{tmp}, v{tmp+1}, v{tmp+2}
v_max_f32 v{M}, v{M}, v{tmp+3}''')
    for i in range(4): a(f'v_sub_f32 v{S+i}, v{S+i}, v{M}')
    for i in range(4): a(f'v_mul_f32 v{S+i}, 0x3fb8aa3b, v{S+i}')
    for i in range(4): a(f'v_exp_f32 v{S+i}, v{S+i}')
    a(f'''v_add_f32 v{L_}, v{S}, v{S+1}
v_add_f32 v{tmp}, v{S+2}, v{S+3}
v_cvt_pk_bf16_f32 v{tmp+2}, v{S}, v{S+1}
v_cvt_pk_bf16_f32 v{tmp+3}, v{S+2}, v{S+3}
v_add_f32 v{L_}, v{L_}, v{tmp}
ds_write_b64 v{vPW}, {vr(tmp+2,2)}''')
    xl('v_add_f32', L_, tmp)
    a(f'''s_mov_b64 exec, 15
ds_write_b32 v{tmp+4}, v{L_} offset:{LS-MX}
s_mov_b64 exec, -1''')
    a('s_waitcnt lgkmcnt(0)')
    setflag(F_S4)
    HA = X; WD = D
    for ks in range(2): a(f'ds_read_b64_tr_b16 {vr(WD+4*ks,2)}, v{vTR} offset:{LWD-LWO+4096*ks}\nds_read_b64_tr_b16 {vr(WD+4*ks+2,2)}, v{vTR} offset:{LWD-LWO+4096*ks+512}')
    for i in range(8): a(f'v_mov_b32 v{ACC+i}, 0')
    spin(vFL, F_S4-FL, tmp)
    OG = S; RL = v('RL', 2, 2)
    a(f'''ds_read2_b32 {vr(tmp,2)}, v{vMX} offset0:16 offset1:20
ds_read2_b32 {vr(tmp+2,2)}, v{vMX} offset0:24 offset1:28''')
    for u in range(2):
        a(f's_mov_b32 exec_lo, {0x000f000f << (4*u)}\ns_mov_b32 exec_hi, {0x000f000f << (4*u)}')
        for ks in range(8): a(f'ds_read_b128 {vr(BB+32*u+4*ks,4)}, v{vPB} offset:{64*ks}')
    a(f'''s_mov_b64 exec, -1
s_waitcnt lgkmcnt(0)
v_add_f32 v{tmp}, v{tmp}, v{tmp+1}
v_add_f32 v{tmp+2}, v{tmp+2}, v{tmp+3}
v_add_f32 v{tmp}, v{tmp}, v{tmp+2}
v_rcp_f32 v{RL}, v{tmp}
v_log_f32 v{tmp}, v{tmp}
v_mov_b32 v{tmp+1}, 0x3fb8aa3b
v_fma_f32 v{OG+2}, v{M}, v{tmp+1}, v{tmp}
v_mov_b32 v{OG+3}, s60''')
    a(hld)
    T(7)
    def pv(k0, k1):
        n = 2*(k1-k0); dep = 4
        items = [(ks, u) for ks in range(k0, k1) for u in range(2)]
        def mf(i):
            ks, u = items[i]
            a(f'v_mfma_f32_16x16x32_bf16 {vr(ACC,4)}, {vr(BA+8*ks+4*u,4)}, {vr(BB+32*u+4*ks,4)}, {vr(ACC,4)}')
        for i, (ks, u) in enumerate(items):
            r = BA+8*ks+4*u
            a(f'ds_read_b64_tr_b16 {vr(r,2)}, v{vTV+u} offset:{8192*ks}\nds_read_b64_tr_b16 {vr(r+2,2)}, v{vTV+u} offset:{8192*ks+1024}')
            if i >= dep: a(f's_waitcnt lgkmcnt({2*dep})'); mf(i-dep)
        for i in range(max(n-dep, 0), n):
            a(f's_waitcnt lgkmcnt({2*(n-1-i)})'); mf(i)
    if vsplit:
        PAD()
        spin(vFL, F_LD+8-FL, tmp, 1)
        pv(0, vs)
    PAD()
    a('s_barrier                          ; B1')
    T(8)
    pv(vs if vsplit else 0, 8)
    PAD()
    a(f'''s_mov_b32 exec_lo, 0x00ff00ff
s_mov_b32 exec_hi, 0x00ff00ff
s_cmp_eq_u32 s62, 0
v_pk_mul_f32 {vr(ACC,2)}, {vr(ACC,2)}, {vr(RL,2)} op_sel_hi:[1,0]
v_pk_mul_f32 {vr(ACC+2,2)}, {vr(ACC+2,2)}, {vr(RL,2)} op_sel_hi:[1,0]
v_cvt_pk_bf16_f32 v{OG}, v{ACC}, v{ACC+1}
v_cvt_pk_bf16_f32 v{OG+1}, v{ACC+2}, v{ACC+3}''')
    st2(f'buffer_store_dwordx4 {vr(OG,4)}, v{vPO}, s[44:47], 0 offen', 'po_st')
    a('s_mov_b64 exec, -1')
    T(9)
    a(f'''s_waitcnt vmcnt(1)
L_ph:
v_cmp_ne_u32 vcc, s60, v{HG+1}
s_cbranch_vccz L_ph_d
{hld}
s_sub_u32 s68, s68, 1
s_waitcnt vmcnt(0)
s_cbranch_scc0 L_ph
s_mov_b32 s68, 0
L_ph_d:
ds_write_b32 v{vHW}, v{HG}''')
    for ks in range(2): a(f'ds_read_b128 {vr(HA+4*ks,4)}, v{vAH} offset:{64*ks}')
    for k2 in range(2): a(f's_waitcnt lgkmcnt({1-k2})\nv_mfma_f32_16x16x32_bf16 {vr(ACC+4,4)}, {vr(WD+4*k2,4)}, {vr(HA+4*k2,4)}, {vr(ACC+4,4)}')
    PAD()
    a('s_mov_b32 exec_lo, 0x00030003\ns_mov_b32 exec_hi, 0x00030003\ns_cmp_eq_u32 s62, 0')
    for i in range(4): a(f'v_add_u32 v{ACC+4+i}, 0x80, v{ACC+4+i}')
    for i in range(4): a(f'v_perm_b32 v{ACC+4+i}, v{ACC+4+i}, v{OG+3}, s{20+i}')
    st2(f'buffer_store_dwordx4 {vr(ACC+4,4)}, v{vPS}, s[44:47], s67 offen', 'pfs')
    a('s_mov_b64 exec, -1')
    oit = [(G+4*i, vGO, '0', 512*i, [3]) for i in range(4)]
    if osleep == 'w': a('s_waitcnt vmcnt(0)')
    elif osleep: a(f's_sleep {osleep}')
    for it in oit: a(f'buffer_load_dwordx4 {vr(it[0],4)}, v{it[1]}, s[44:47], 0 offen offset:{it[3]} sc1')
    for i in range(4): a(f'v_mov_b32 v{ACC+i}, 0')
    wort = lambda ks: f'ds_read_b64_tr_b16 {vr(BB+4*ks,2)}, v{vTR} offset:{4096*ks}\nds_read_b64_tr_b16 {vr(BB+4*ks+2,2)}, v{vTR} offset:{4096*ks+512}'
    if b2a:
        a('s_barrier                          ; B2a')
        for ks in range(4): a(wort(ks))
    PAD()
    RB()
    ppoll(oit, 44, 'po', issued=True)
    T(10)
    if not (diag and keep and '#q' in keep): C(14)
    Wt = HG; U = D; Aa = v('Aa', 6, 2)
    a(f'''v_max3_f32 v{M}, v{G+2}, v{G+6}, v{G+10}
v_max_f32 v{M}, v{M}, v{G+14}
v_mov_b32 v{tmp}, v{M}''')
    for i in range(2): a(f'v_lshlrev_b32 v{U+4*i}, 16, v{G+4*i}')
    a(f'v_permlane16_swap_b32 v{M}, v{tmp}\nv_max_f32 v{M}, v{M}, v{tmp}\nv_mov_b32 v{tmp}, v{M}')
    for i in range(2, 4): a(f'v_lshlrev_b32 v{U+4*i}, 16, v{G+4*i}')
    a(f'v_permlane32_swap_b32 v{M}, v{tmp}\nv_max_f32 v{M}, v{M}, v{tmp}')
    for i in range(4): a(f'v_sub_f32 v{Wt+i}, v{G+4*i+2}, v{M}')
    for i in range(4): a(f'v_exp_f32 v{Wt+i}, v{Wt+i}\nv_and_b32 v{U+4*i+1}, 0xffff0000, v{G+4*i}\nv_lshlrev_b32 v{U+4*i+2}, 16, v{G+4*i+1}\nv_and_b32 v{U+4*i+3}, 0xffff0000, v{G+4*i+1}')
    PAD()
    sel = lambda i: ('op_sel_hi:[1,0,1]' if i % 2 == 0 else 'op_sel:[0,1,0] op_sel_hi:[1,1,1]')
    for e in (0, 2): a(f'v_pk_mul_f32 {vr(Aa+e,2)}, {vr(U+e,2)}, {vr(Wt,2)} op_sel_hi:[1,0]')
    a(f'v_pk_add_f32 {vr(Aa+4,2)}, {vr(Wt,2)}, {vr(Wt+2,2)}')
    for i in range(1, 4):
        for e in (0, 2): a(f'v_pk_fma_f32 {vr(Aa+e,2)}, {vr(U+4*i+e,2)}, {vr(Wt+(i&2),2)}, {vr(Aa+e,2)} {sel(i)}')
        if i == 1: a(f'v_add_f32 v{Aa+4}, v{Aa+4}, v{Aa+5}')
        if i == 2: a(f'v_mov_b32 v{Aa+5}, v{Aa+4}')
    a(f'''v_permlane32_swap_b32 v{Aa+4}, v{Aa+5}
v_permlane32_swap_b32 v{Aa}, v{Aa+1}
v_permlane32_swap_b32 v{Aa+2}, v{Aa+3}
v_add_f32 v{Aa+4}, v{Aa+4}, v{Aa+5}
v_add_f32 v{Aa}, v{Aa}, v{Aa+1}
v_add_f32 v{Aa+2}, v{Aa+2}, v{Aa+3}
v_mov_b32 v{Aa+5}, v{Aa+4}
v_permlane16_swap_b32 v{Aa}, v{Aa+2}
v_permlane16_swap_b32 v{Aa+4}, v{Aa+5}
v_add_f32 v{Aa+4}, v{Aa+4}, v{Aa+5}
v_add_f32 v{Aa}, v{Aa}, v{Aa+2}
v_rcp_f32 v{Aa+4}, v{Aa+4}
v_mul_f32 v{Aa}, v{Aa}, v{Aa+4}
v_cvt_pk_bf16_f32 v{Aa}, v{Aa}, v{Aa}
ds_write_b16 v{vOW}, v{Aa}''')
    PAD()
    a('s_waitcnt lgkmcnt(0)\ns_barrier                          ; B2')
    T(11)
    for ks in range(4):
        a(f'ds_read_b128 {vr(BA+4*ks,4)}, v{vAO} offset:{64*ks}')
        if not b2a: a(wort(ks))
    for ks in range(4):
        a(f's_waitcnt lgkmcnt({3-ks if b2a else 9-3*ks})')
        a(f'v_mfma_f32_16x16x32_bf16 {vr(ACC,4)}, {vr(BB+4*ks,4)}, {vr(BA+4*ks,4)}, {vr(ACC,4)}')
    PAD()
    a('s_mov_b32 exec_lo, 0x00030003\ns_mov_b32 exec_hi, 0x00030003')
    for i in range(4): a(f'v_perm_b32 v{ACC+i}, v{ACC+i}, v{OG+3}, s{20+i}')
    a(f'buffer_store_dwordx4 {vr(ACC,4)}, v{vPS}, s[44:47], s66 offen sc1')
    if b3: a('s_waitcnt vmcnt(0)\ns_barrier                          ; B3')
    if wb == 'all': a('s_cmp_lg_u32 s4, 0\ns_cbranch_scc1 L_nowb\nbuffer_wbl2 sc1\nL_nowb:')
    if wb == 'j0': a('s_or_b32 s3, s4, s6\ns_cbranch_scc1 L_nowb\nbuffer_wbl2 sc1\nL_nowb:')
    T(12)
    if diag:
        T(13)
        if diag != 'amp': a(f's_mov_b32 s{TSB+30}, 0')
        a('s_add_u32 s4, s4, 1')
    else: a('s_endpgm')
    if diag: a('L_fin:')
    if diag == 'ws': a(ts_store(16, 30, 4, srd=36))
    if diag == 'amp':
        A_, B_, sign, wave, K = amp[:5]
        if len(amp) > 5: a(f's_cmp_lg_u32 s5, {amp[5]}\ns_cbranch_scc1 L_end')
        ia, ib = NAMES.index(A_), NAMES.index(B_)
        a(f's_cmp_lg_u32 s4, {wave}\ns_cbranch_scc1 L_end\ns_waitcnt lgkmcnt(0)\ns_sub_u32 s3, s{TSB+2*ib}, s{TSB+2*ia}')
        if sign < 0: a('s_sub_u32 s3, 2000, s3')
        a(f'''s_min_u32 s3, s3, 4000
s_mul_i32 s3, s3, {K}
s_memrealtime s[34:35]
s_waitcnt lgkmcnt(0)
s_add_u32 s3, s3, s34
L_amp:
s_sleep 2
s_memrealtime s[34:35]
s_waitcnt lgkmcnt(0)
s_sub_u32 s7, s34, s3
s_cmp_lt_i32 s7, 0
s_cbranch_scc1 L_amp''')
    if diag: a('L_end:\ns_endpgm')
    a(kdesc(KN+'_kernel', v.n))
    return hdr_ref + pad(a.text())

if __name__ == '__main__':
    open('kfinal.s', 'w').write(gen(None))
```

```python
import sys
from asmlib import *
from hz import pad

EPOCH=0; EX=0x2000; EH=0x4000; EQ=0x10000; EF=0x30000; DUMMY=0x4C000; EO=0x80000; ES=0x100000; WSZ=0x180000
LK=0; LV=65536; LW1=98304; LWO=131072; LWD=147456; MB=155648
XS=1088; QS=320; PS_=576; OS=320
XN=MB; LQ=MB+2304; LP=MB+3584; FL=MB+6144; LO=MB+6400; LH=MB+7168; MX=MB+7424; LS=MB+7488
F_W1F, F_S2, F_S3, F_S4, F_G, F_LD, F_MODE = [FL+16*i for i in range(7)]
LDS_TOTAL=163840
TAGINC=0x9E3779B9
BUD=1000000


DOC = """;
;
;   phase 1  128 rows x 128 columns of wq (j < 16: q head 4h + (j&3), row quarter j>>2) or of
;   w_down   64 rows x 64 columns (rows 64(j-4), columns 64h)         -> partial f
;   wo       128 rows x 64 columns (q head 4h + (j>>3), columns 64(j&7)) -> partial s
;
; Hand-offs between workgroups go through d_ws in self-validating granules: every 8/16-byte store
; carries this launch's tag (tag = word 0 of d_ws at entry + 0x9E3779B9; workgroup 0 stores the tag
; A producer uses ordinary stores only after it has read, from all 32 workgroups of its group, a
; tagged XCC id equal to its own (all its readers then share its L2); otherwise, and for every
"""

class V:
    def __init__(self, start=1): self.n = start; self.m = {}
    def __call__(self, name, cnt=1, align=1):
        if name in self.m: return self.m[name]
        self.n = (self.n + align-1)//align*align
        self.m[name] = self.n; self.n += cnt
        return self.m[name]
def vr(a, n): return f'v[{a}:{a+n-1}]'
NAMES = 'start,karg,x,w1,pub1,q,kready,sm,b1,pubo,ogot,b2,pubs,fin,#c1,#c2'.split(',')

def gen(diag=None, keep=None, NF=20, NFE=22, gE=8, wt=4, kf=1, vs=6, b2a=True, wb=None, g0=None, lp={'po_st':'sc0','pfs':'sc0','p1':'sc0'}, qsleep=0, early='', cprio=2, lprio=0, b0late=True, b3=True, jit=0, osleep=0, fsleep=0, xsleep=4, spin_sleep=1,
        pre='', vsplit=True, forceglobal=False, pol='nt', amp=None, cpf=False, pads=False, tlb=False, skip=(), p1pol='sc1', expol='', wide=None, xtries=3):
    if amp: diag = 'amp'; keep = [amp[0], amp[1]]
    a = A()
    hdr_ref = open('cdna_kernels/%s.s.ref' % KN).read().split('; Override')[0]
    extra = f'; ts nwg=256 nwave=5 names={",".join(NAMES)}' if diag == 'ws' else ''
    a(header(f'; @launch grid=(256,1,1) block=(320,1,1) lds={LDS_TOTAL}', extra + ('\n' if extra else '') + DOC.rstrip('\n')))
    a(kstart(KN+'_kernel'))
    jn = [0]
    def T(i):
        if jit and i > 0:
            jn[0] += 1
            a(f'''s_mul_i32 s69, s2, 0x9E3779B1
s_mul_i32 s70, s4, 0x85EBCA77
s_add_u32 s69, s69, s70
s_add_u32 s69, s69, {(jit*7919 + jn[0]*104729) & 0x7fffffff}
s_mul_i32 s69, s69, 0xC2B2AE3D
s_lshr_b32 s69, s69, 24
s_cmp_lt_u32 s69, 200
s_cbranch_scc1 L_j{jn[0]}_d
s_sub_u32 s69, s69, 200
L_j{jn[0]}:
s_sleep 6
s_sub_u32 s69, s69, 1
s_cbranch_scc0 L_j{jn[0]}
L_j{jn[0]}_d:''')
        if not diag: return
        if keep is None or NAMES[i] in keep or i == 0: a(ts(i))
        else: a(f's_mov_b32 s{TSB+2*i}, 0')
    def C(i):
        if diag and diag != 'amp': a(f's_sub_u32 s{TSB+2*i}, {BUD}, s68\ns_mov_b32 s68, {BUD}')
    def RB():
        if diag and diag != 'amp': a(f's_mov_b32 s68, {BUD}')
    lab = [0]; padn = [0]
    def spin(flag_v, off, tmp, n=4):
        lab[0] += 1; L = f'L_sp{lab[0]}'
        if n == 4:
            rd = f'''ds_read_b128 {vr(tmp,4)}, v{flag_v} offset:{off}
s_waitcnt lgkmcnt(0)
v_and_b32 v{tmp}, v{tmp}, v{tmp+1}
v_and_b32 v{tmp+2}, v{tmp+2}, v{tmp+3}
v_and_b32 v{tmp}, v{tmp}, v{tmp+2}'''
        else:
            rd = f'ds_read_b32 v{tmp}, v{flag_v} offset:{off}\ns_waitcnt lgkmcnt(0)'
        a(f'''{L}:
{rd}
v_cmp_ne_u32 vcc, 0, v{tmp}
s_cbranch_vccnz {L}_d
s_sleep {spin_sleep}
s_sub_u32 s68, s68, 1
s_cbranch_scc0 {L}
s_mov_b32 s68, 0
{L}_d:''')
    def PAD():
        if pads:
            a(f'L_pad{padn[0]}:\ns_cbranch_execz L_pad{padn[0]+1}'); padn[0] += 1
    def ppoll(items, srd, name, issued=False, tp=None, first=0, lo=False):
        def ld(it): return f'buffer_load_dwordx4 {vr(it[0],4)}, v{it[1]}, s[{srd}:{srd+3}], {it[2]} offen offset:{it[3]} sc1'
        if not issued:
            for it in items: a(ld(it))
        if first: a(f's_waitcnt vmcnt({first})\ns_branch L_{name}_c')
        a(f'L_{name}:\ns_waitcnt vmcnt(0)\nL_{name}_c:')
        for i, it in enumerate(items):
            m = 8+2*i; d = it[0]
            if it[4] == 'P':
                a(f'v_perm_b32 v{tp}, v{d+1}, v{d}, s24\nv_perm_b32 v{tp+1}, v{d+3}, v{d+2}, s25\nv_or_b32 v{tp}, v{tp}, v{tp+1}\nv_cmp_ne_u32 s[{m}:{m+1}], s60, v{tp}')
            else:
                a(f'v_cmp_ne_u32 s[{m}:{m+1}], s60, v{d+it[4][0]}')
                for t in it[4][1:]: a(f'v_cmp_ne_u32 s[{16+2*i}:{17+2*i}], s60, v{d+t}')
        for i, it in enumerate(items):
            if it[4] != 'P' and len(it[4]) > 1: a(f's_or_b64 s[{8+2*i}:{9+2*i}], s[{8+2*i}:{9+2*i}], s[{16+2*i}:{17+2*i}]')
        if len(items) == 4: a('s_or_b64 s[16:17], s[8:9], s[10:11]\ns_or_b64 s[18:19], s[12:13], s[14:15]\ns_or_b64 s[16:17], s[16:17], s[18:19]')
        elif len(items) == 2: a('s_or_b64 s[16:17], s[8:9], s[10:11]')
        elif items[0][4] == 'P' or len(items[0][4]) == 1: a('s_or_b64 s[8:9], s[8:9], s[8:9]')
        a(f's_cbranch_scc0 L_{name}_d')
        for i, it in enumerate(items):
            a(f's_mov_b64 exec, s[{8+2*i}:{9+2*i}]\ns_cbranch_execz L_{name}_s{i}\n{ld(it)}\nL_{name}_s{i}:')
        a(f'''{'s_mov_b32 exec_lo, -1' if lo else 's_mov_b64 exec, -1'}
s_sub_u32 s68, s68, 1
s_cbranch_scc0 L_{name}
s_mov_b32 s68, 0
s_waitcnt vmcnt(0)
L_{name}_d:''')
    def st2(text, name, gp='sc1'):
        a(f's_cbranch_scc1 L_{name}_l\n{text} {gp}\ns_branch L_{name}_e\nL_{name}_l:\n{text} {lp.get(name, str())}\nL_{name}_e:')

    T(0)
    if amp and amp[2] == 'clk': a('s_memtime s[100:101]')
    a(f'''s_load_dwordx16 s[8:23], s[0:1], 0
s_load_dwordx8 s[24:31], s[0:1], 64
v_lshrrev_b32 v1, 6, v0
s_lshr_b32 s6, s2, 3              ; j
v_readfirstlane_b32 s4, v1        ; wave
s_cmp_ge_u32 s6, 32
s_cbranch_scc1 L_end0
v_and_b32 v0, 63, v0
s_and_b32 s5, s2, 7               ; h
s_cmp_lg_u32 s4, 0
s_cbranch_scc1 L_disp
; K image: 256-byte rows, 16-byte chunk c of row r at slot c ^ (r & 15) (conflict-free ds_read_b128)
v_lshrrev_b32 v1, 4, v0
v_and_b32 v5, 15, v0
v_lshlrev_b32 v6, 8, v1
v_xor_b32 v7, v1, v5
v_lshl_add_u32 v12, v7, 4, v6
s_movk_i32 s3, 0x80
v_xor_b32 v13, 64, v12
v_xor_b32 v14, s3, v12
v_xor_b32 v15, s3, v13
s_lshr_b32 s3, s6, 4
s_lshl_b32 s34, s3, 26
s_lshl_b32 s3, s5, 3
s_or_b32 s3, s3, 7
s_lshl_b32 s3, s3, 20
s_add_u32 s34, s34, s3
s_and_b32 s3, s6, 15
s_lshl_b32 s3, s3, 16
s_add_u32 s34, s34, s3
s_lshl_b32 s38, 1, 16
s_mov_b32 s39, 0x20000
s_add_u32 s57, s5, s6
s_and_b32 s57, s57, 15
s_lshl_b32 s57, s57, 12
s_movk_i32 s61, 0x1000
s_mov_b32 m0, {LK}
s_mov_b32 s35, {kf-1}
s_waitcnt lgkmcnt(0)
s_add_u32 s36, s10, s34
s_addc_u32 s37, s11, 0''')
    if diag and keep and 'pub1' in keep: T(4)
    a('L_k0:')
    for k in range(4): a(f'buffer_load_dwordx4 v{12+k}, s[36:39], s57 offen offset:{1024*k} {pol} lds')
    a(f'''s_add_u32 s57, s57, s61
s_bitset0_b32 s57, 16
s_add_u32 m0, m0, s61
s_sub_u32 s35, s35, 1
s_cbranch_scc0 L_k0
s_branch L_loader2
L_end0:
s_endpgm
.p2align 8
L_disp:''')
    a('s_branch L_comp\nL_loader2:')
    if lprio: a(f's_setprio {lprio}')
    T(1)
    a(f'''; x -> LDS, clear the flag words, decode the phase-1 unit (s[40:43]; no unit: 0 records, zeros land)
s_mov_b32 m0, {LP}
s_mov_b32 s64, s8
s_mov_b32 s65, s9
s_movk_i32 s66, 0x800
s_mov_b32 s67, 0x20000
v_lshlrev_b32 v7, 4, v0
buffer_load_dwordx4 v7, s[64:67], 0 offen lds
buffer_load_dwordx4 v7, s[64:67], 0 offen offset:1024 lds
v_mov_b32 v8, 0
v_lshlrev_b32 v9, 2, v0
v_add_u32 v9, {FL}, v9
ds_write_b32 v9, v8
v_lshlrev_b32 v7, 1, v1
v_xor_b32 v7, v7, v5
v_lshlrev_b32 v7, 4, v7
s_lshl_b32 s3, s5, 4
s_add_u32 s3, s3, s6
s_sub_u32 s3, s3, 16
s_lshr_b32 s58, s3, 3
s_bfe_u32 s7, s3, 0x20001
s_mulk_i32 s7, 1792
s_add_u32 s58, s58, s7
s_bitcmp0_b32 s3, 0
s_cselect_b32 s40, s20, s22
s_cselect_b32 s41, s21, s23
s_lshl_b32 s33, s5, 2
s_and_b32 s7, s6, 3
s_add_u32 s33, s33, s7
s_lshr_b32 s7, s6, 2
s_lshl_b32 s7, s7, 12
s_add_u32 s33, s33, s7
s_movk_i32 s56, 3584
s_cmp_lt_u32 s6, 16
s_cselect_b32 s58, s33, s58
s_cselect_b32 s56, 0x2000, s56
s_cselect_b32 s40, s14, s40
s_cselect_b32 s41, s15, s41
s_cselect_b32 s3, 0, s3
s_cmp_lt_u32 s3, 112
s_cselect_b32 s58, s58, 0
s_cselect_b32 s42, s56, 0
s_cselect_b32 s7, 1, 0
s_lshl_b32 s58, s58, 8
s_mulk_i32 s42, 127
s_lshl_b32 s7, s7, 8
s_add_u32 s42, s42, s7
s_add_u32 s40, s40, s58
s_addc_u32 s41, s41, 0
s_mov_b32 s43, 0x20000
s_lshl_b32 s32, s56, 2
s_sub_u32 s33, s32, 0x400         ; 4*stride-1024
s_lshl_b32 s32, s32, 2            ; 16*stride
v_mad_u32_u24 v8, v1, s56, v7
v_xor_b32 v10, 0x80, v8
v_add_u32 v9, s33, v8
v_add_u32 v10, s33, v10
v_add_u32 v10, s33, v10
v_add_u32 v11, s33, v10
s_mov_b32 m0, {LW1}
s_mov_b32 s33, 0''')
    Wc = [NF-1]
    def group(vo, srd, so='s33', waits=(1,1,1,1)):
        for k in range(4):
            if waits[k]: a(f's_waitcnt vmcnt({Wc[0]})')
            a(f'buffer_load_dwordx4 v{vo[k]}, s[{srd}:{srd+3}], {so} offen offset:{1024*k} {pol} lds')
    def loop(n, vo, srd, step, wrap=False):
        if n <= 0: return
        lab[0] += 1; L = f'L_ld{lab[0]}'
        a(f's_mov_b32 s35, {n-1}\n{L}:')
        group(vo, srd)
        a(f's_add_u32 s33, s33, {step}')
        if wrap: a('s_bitset0_b32 s33, 16')
        a(f's_add_u32 m0, m0, s61\ns_sub_u32 s35, s35, 1\ns_cbranch_scc0 {L}')
    def lflag(off): a(f's_mov_b64 exec, 1\nds_write_b32 v24, v25 offset:{off-FL}\ns_mov_b64 exec, -1')
    ga = NF//4
    g0 = g0 or max(1, ga - kf)
    for g in range(g0):
        group((8, 9, 10, 11), 40, waits=(0, 0, 0, 0)); a('s_add_u32 s33, s33, s32\ns_add_u32 m0, m0, s61')
    a('s_waitcnt lgkmcnt(0)')
    if not b0late: a('s_barrier')
    a(f'''; descriptors for V s[44:47], wo s[48:51], w_down s[52:55]; tag base; x values and offsets of the final step
s_add_u32 s44, s12, s34
s_addc_u32 s45, s13, 0
s_mov_b32 s46, 0x10000
s_mov_b32 s47, 0x20000
s_load_dword s60, s[30:31], {EPOCH}
s_and_b32 s3, s6, 1
s_lshl_b32 s3, s3, 3
s_add_u32 s3, s3, s5
s_lshl_b32 s3, s3, 4
s_lshr_b32 s7, s6, 1
s_add_u32 s3, s3, s7
s_lshl_b32 s3, s3, 3
s_load_dwordx2 s[62:63], s[8:9], s3
s_mov_b32 s68, {BUD}
s_mov_b32 s10, 0x0c0c0400
s_mov_b32 s11, 0x04000c0c
v_add_u32 v16, v6, v7
v_xor_b32 v17, 0x80, v16
v_and_b32 v7, 1, v1
v_lshlrev_b32 v6, 2, v7
v_add_u32 v26, s3, v6
s_lshl_b32 s3, s5, 15
s_lshl_b32 s7, s6, 4
s_add_u32 s3, s3, s7
s_add_u32 s3, s3, {ES}
v_and_b32 v6, 31, v0
v_lshlrev_b32 v6, 9, v6
v_add_u32 v27, s3, v6
v_lshrrev_b32 v2, 3, v0
v_and_b32 v4, 7, v0
v_lshlrev_b32 v3, 1, v7
v_xor_b32 v3, v3, v4
v_lshlrev_b32 v3, 4, v3
v_lshl_add_u32 v20, v2, 10, v3
v_xor_b32 v21, 64, v20
v_add_u32 v21, 7168, v21
v_add_u32 v22, 14336, v20
v_add_u32 v23, 14336, v21
v_mov_b32 v24, {FL}
v_mov_b32 v25, 1
s_lshr_b32 s3, s6, 3
s_lshl_b32 s7, s5, 2
s_add_u32 s3, s3, s7
s_lshl_b32 s3, s3, 17
s_and_b32 s7, s6, 7
s_lshl_b32 s7, s7, 7
s_add_u32 s3, s3, s7
s_add_u32 s48, s16, s3
s_addc_u32 s49, s17, 0
s_mov_b32 s50, {127*1024+128}
s_mov_b32 s51, 0x20000
s_sub_u32 s3, s6, 4
s_cselect_b32 s3, 0, s3
s_cselect_b32 s54, 0, {63*1024+128}
s_lshl_b32 s3, s3, 16
s_lshl_b32 s7, s5, 7
s_add_u32 s3, s3, s7
s_add_u32 s52, s24, s3
s_addc_u32 s53, s25, 0
s_mov_b32 s55, 0x20000''')
    if b0late: a('s_barrier')
    W1v = (8, 9, 10, 11); Kv = (12, 13, 14, 15); Vv = (16, 16, 17, 17); W2v = (20, 21, 22, 23)
    loop(ga-g0, W1v, 40, 's32')
    a(f's_waitcnt vmcnt({4*ga})'); lflag(F_LD+12); T(5)
    loop(8-ga, W1v, 40, 's32')
    a(f's_mov_b32 s33, 0\ns_mov_b32 m0, {LWD}')
    loop(2, W2v, 52, '0x8000')
    a(f's_mov_b32 s33, s57\ns_mov_b32 m0, {LK+4096*kf}')
    loop(ga-2, Kv, 36, 's61', True)
    a(f's_waitcnt vmcnt({4*ga})'); lflag(F_LD); T(3)
    if wide:
        n, wn, allw = wide
        if not allw:
            a('s_cmp_lt_u32 s6, 16\ns_cbranch_scc0 L_wide')
            loop(n, Kv, 36, 's61', True)
            a('s_branch L_wide_e\nL_wide:')
        sv = Wc[0]; Wc[0] = wn-1
        loop(n, Kv, 36, 's61', True)
        Wc[0] = sv
        a('L_wide_e:')
        loop(16-kf-ga+2-n, Kv, 36, 's61', True)
    else: loop(16-kf-ga+2, Kv, 36, 's61', True)
    loop(ga, Vv, 44, 's61', True)
    a(f's_waitcnt vmcnt({4*ga})'); lflag(F_LD+4); T(6)
    loop(8-ga, Vv, 44, 's61', True)
    a('; the second half of V overwrites the phase-1 weights: wait until all four waves have read them')
    spin(24, F_W1F-FL, 28)
    if wt < 4:
        a(f's_mov_b32 s57, s33\ns_mov_b32 s33, 0\ns_mov_b32 m0, {LWO}')
        loop(4-wt, W2v, 48, '0x8000')
        a(f's_mov_b32 s33, s57\ns_mov_b32 m0, {LV+32768}')
    loop(gE-8, Vv, 44, 's61', True)
    Wc[0] = NFE-1
    loop(16-gE, Vv, 44, 's61', True)
    nW2 = 4*wt
    need = 64 - 8*vs
    done = [not vsplit]
    def vflag(cnt, last=False):
        if not done[0] and (cnt + need >= NFE or last):
            a(f's_waitcnt vmcnt({cnt+need})'); lflag(F_LD+8); done[0] = True
    vflag(0, wt == 0)
    a(f's_mov_b32 s33, {0x8000*(4-wt)}\ns_mov_b32 m0, {LWO+4096*(4-wt)}')
    cnt = 0
    for g in range(wt):
        group(W2v, 48, waits=[1 if cnt+k < NFE else 0 for k in range(4)]); cnt += 4
        vflag(cnt, g == wt-1)
        if g < wt-1: a('s_add_u32 s33, s33, 0x8000\ns_add_u32 m0, m0, s61')
    T(7)
    a(f's_waitcnt vmcnt({nW2})')
    T(2)
    a('s_barrier                          ; B1: V landed')
    T(8)
    G = 32
    a(f'''s_add_u32 s60, s60, {TAGINC}
s_mov_b32 s64, s30
s_mov_b32 s65, s31
s_mov_b32 s66, {WSZ}
s_mov_b32 s67, 0x20000
s_mov_b32 s34, 0x4000
s_mov_b32 s56, s26
s_mov_b32 s57, s27
s_movk_i32 s58, 0x800
s_mov_b32 s59, 0x20000
s_mov_b32 s24, s10
s_mov_b32 s25, s11
v_and_b32 v5, 1, v1
v_cmp_eq_u32 vcc, 1, v5
v_mov_b32 v2, s62
v_mov_b32 v3, s63
v_cndmask_b32 v2, v2, v3, vcc
v_lshlrev_b32 v28, 16, v2
v_and_b32 v29, 0xffff0000, v2
s_setprio 3
s_waitcnt vmcnt(0)''')
    T(10)
    if b2a: a('s_barrier')
    a('s_barrier')
    T(11)
    def red32(r):
        for k in range(4): a(f'v_and_b32 v{r+k}, 0xffffff00, v{r+k}')
        a(f'''v_permlane16_swap_b32 v{r}, v{r+2}
v_permlane16_swap_b32 v{r+1}, v{r+3}
v_pk_add_f32 {vr(r,2)}, {vr(r,2)}, {vr(r+2,2)}''')
        for k in (8, 4, 2, 1):
            for e in range(2): a(f'v_add_f32_dpp v{r+e}, v{r+e}, v{r+e} row_ror:{k} row_mask:0xf bank_mask:0xf')
        a(f'v_cvt_pk_bf16_f32 v{r+1}, v{r}, v{r+1}\nv_lshlrev_b32 v{r}, 16, v{r+1}\nv_and_b32 v{r+1}, 0xffff0000, v{r+1}')
    a('; final step: lane p < 32 reads producer p.  f partials (same group) first; the s partials come from\n; all groups and are first read once this workgroup\'s own write-through stores have landed (B3): a\n; read that comes earlier caches the old line and makes the hand-off slower')
    PAD()
    a(f's_mov_b32 exec_hi, 0\nbuffer_load_dwordx4 {vr(G+4,4)}, v27, s[64:67], s34 offen sc1')
    if b3: a('s_barrier')
    if fsleep: a(f's_sleep {fsleep}')
    a(f'buffer_load_dwordx4 {vr(G,4)}, v27, s[64:67], 0 offen sc1')
    ppoll([(G+4, 27, 's34', 0, 'P')], 64, 'pf', issued=True, first=1, tp=G+8, lo=True)
    red32(G+4)
    a(f'''v_mul_f32 v{G+6}, 0xbfb8aa3b, v{G+4}
v_mul_f32 v{G+7}, 0xbfb8aa3b, v{G+5}
v_exp_f32 v{G+6}, v{G+6}
v_exp_f32 v{G+7}, v{G+7}
v_add_f32 v{G+6}, 1.0, v{G+6}
v_add_f32 v{G+7}, 1.0, v{G+7}
v_rcp_f32 v{G+6}, v{G+6}
v_rcp_f32 v{G+7}, v{G+7}
v_pk_mul_f32 {vr(G+4,2)}, {vr(G+4,2)}, {vr(G+6,2)}
v_cvt_pk_bf16_f32 v{G+5}, v{G+4}, v{G+5}
v_lshlrev_b32 v{G+4}, 16, v{G+5}
v_and_b32 v{G+5}, 0xffff0000, v{G+5}''')
    PAD()
    RB()
    ppoll([(G, 27, '0', 0, 'P')], 64, 'ps', issued=True, tp=G+8, lo=True)
    red32(G)
    a(f'''v_pk_mul_f32 {vr(G,2)}, {vr(G,2)}, {vr(G+4,2)}
v_cvt_pk_bf16_f32 v{G+1}, v{G}, v{G+1}
v_lshlrev_b32 v{G}, 16, v{G+1}
v_and_b32 v{G+1}, 0xffff0000, v{G+1}
v_pk_add_f32 {vr(G,2)}, {vr(G,2)}, v[28:29]
s_mov_b32 exec_lo, 0x10001
v_cvt_pk_bf16_f32 v{G}, v{G}, v{G+1}
buffer_store_dword v{G}, v26, s[56:59], 0 offen''')
    PAD()
    a(f'''; every wave of every workgroup read word 0 before the results summed above were produced
s_cmp_lg_u32 s2, 0
s_cbranch_scc1 L_lend
s_mov_b64 exec, 1
v_mov_b32 v1, {EPOCH}
v_mov_b32 v2, s60
buffer_store_dword v2, v1, s[64:67], 0 offen
L_lend:''')
    if diag:
        T(13); C(15)
        for i in ((9, 12) if keep and 'pub1' in keep else (4, 9, 12)): T(i)
        if diag != 'amp': a(f's_mov_b32 s{TSB+28}, 0')
        a('s_branch L_fin')
    else: a('s_endpgm')
    v = V(8)
    vFL = v('FL'); vFLW = v('FLW'); vONE = v('ONE')
    tmp = v('tmp', 8, 4); X = v('X', 8, 4)
    def setflag(off): a(f's_mov_b64 exec, 1\nds_write_b32 v{vFLW}, v{vONE} offset:{off-FL}\ns_mov_b64 exec, -1')
    a(f'''; =========================== compute waves (w = 0..3) ===========================
L_comp:
s_barrier
s_setprio {cprio}
s_sub_u32 s4, s4, 1               ; w
s_mov_b32 s46, {WSZ}
s_mov_b32 s47, 0x20000
s_waitcnt lgkmcnt(0)
s_load_dword s60, s[30:31], {EPOCH}
s_mov_b32 s44, s30
s_mov_b32 s45, s31
s_mov_b32 s68, {BUD}
s_getreg_b32 s63, hwreg(HW_REG_XCC_ID)
s_mov_b32 s24, 0x0c0c0400
s_mov_b32 s25, 0x04000c0c
s_mov_b32 s20, 0x07060500
s_mov_b32 s21, 0x07060501
s_mov_b32 s22, 0x07060502
s_mov_b32 s23, 0x07060503
s_cmp_lt_u32 s6, 16
s_cbranch_scc0 L_ffnunit
s_lshr_b32 s57, s6, 2
s_lshl_b32 s59, s5, 5
s_add_u32 s59, s59, s6
s_lshl_b32 s59, s59, 9
s_add_u32 s59, s59, {EQ}
s_movk_i32 s61, 0x2000
s_mov_b32 s58, -1
s_branch L_unitdone
L_ffnunit:
s_lshl_b32 s3, s5, 4
s_add_u32 s3, s3, s6
s_sub_u32 s3, s3, 16
s_bfe_u32 s57, s3, 0x20001
s_and_b32 s59, s3, 1
s_lshl_b32 s59, s59, 2
s_add_u32 s59, s59, s57
s_andn2_b32 s7, s3, 7
s_add_u32 s59, s59, s7
s_lshl_b32 s59, s59, 10
s_add_u32 s59, s59, {EF}
s_movk_i32 s61, 512
s_mov_b32 s58, s3
s_cmp_lt_u32 s3, 112
s_cbranch_scc1 L_unitdone
s_mov_b32 s57, 0
s_mov_b32 s59, {DUMMY}
s_mov_b32 s58, -1
L_unitdone:''')
    T(1)
    vTR = v('TR'); vTV = v('TV', 2); vKA = v('KA', 4); vAX = v('AX'); vAO = v('AO'); vAH = v('AH')
    vQB = v('QB'); vPB = v('PB'); vP1 = v('P1'); vGQ = v('GQ'); vGH = v('GH'); vPO = v('PO'); vGO = v('GO')
    vPS = v('PS'); vQW = v('QW'); vPW = v('PW'); vMX = v('MXa'); vHW = v('HW'); vOW = v('OW'); vGR = v('GR'); vPH = v('PH')
    a(f'''v_mov_b32 v{vFL}, {FL}
v_lshrrev_b32 v{tmp+6}, 5, v0
v_and_b32 v5, 31, v0
v_lshlrev_b32 v2, 10, v{tmp+6}
v_lshl_add_u32 v2, v5, 5, v2
v_add_u32 v2, {LP}, v2
s_lshl_b32 s3, s57, 8
v_lshlrev_b32 v1, 10, v{tmp+6}
v_lshl_add_u32 v1, v5, 3, v1
v_add_u32 v1, s3, v1
v_add_u32 v1, {LP}, v1            ; raw x: this unit's rows, 4 values per lane
v_mul_u32_u24 v3, {XS}, v{tmp+6}
v_lshl_add_u32 v3, v5, 3, v3
v_add_u32 v3, {XN}, v3            ; normalised rows''')
    F = v('F', 16, 4); D = v('Dd', 16, 4)
    spin(vFL, F_LD+12-FL, tmp, 1)
    a(f'''s_add_u32 s60, s60, {TAGINC}
s_and_b32 s63, s63, 15
s_cmp_lg_u32 s4, 0
s_cbranch_scc1 L_nox
s_lshl_b32 s3, s5, 5
s_add_u32 s3, s3, s6
s_lshl_b32 s3, s3, 3
s_add_u32 s3, s3, {EX}
v_mov_b32 v4, s3
v_mov_b32 v6, s63
v_mov_b32 v7, s60
s_mov_b64 exec, 1
buffer_store_dwordx2 v[6:7], v4, s[44:47], 0 offen sc0
s_mov_b64 exec, -1
L_nox:''')
    a(f'ds_read_b128 {vr(X,4)}, v2\nds_read_b128 {vr(X+4,4)}, v2 offset:16\nds_read_b64 {vr(tmp+4,2)}, v1\ns_waitcnt lgkmcnt(1)')
    T(2)
    for i in range(8):
        a(f'v_lshlrev_b32 v{F+2*i}, 16, v{X+i}\nv_and_b32 v{F+2*i+1}, 0xffff0000, v{X+i}')
    def red32l(r, t):
        a(f'v_mov_b32 v{t}, v{r}\nv_permlane16_swap_b32 v{r}, v{t}\nv_add_f32 v{r}, v{r}, v{t}')
        for k in (8, 4, 2, 1): a(f'v_add_f32_dpp v{r}, v{r}, v{r} row_ror:{k} row_mask:0xf bank_mask:0xf')
    for i in range(4): a(f'v_pk_add_f32 {vr(D+2*i,2)}, {vr(F+4*i,2)}, {vr(F+4*i+2,2)}')
    a(f'''v_pk_add_f32 {vr(D,2)}, {vr(D,2)}, {vr(D+2,2)}
v_pk_add_f32 {vr(D+4,2)}, {vr(D+4,2)}, {vr(D+6,2)}
v_pk_add_f32 {vr(D,2)}, {vr(D,2)}, {vr(D+4,2)}
v_add_f32 v{tmp}, v{D}, v{D+1}''')
    red32l(tmp, tmp+1)
    a(f'v_mul_f32 v{tmp}, 0xbb000000, v{tmp}          ; -mean')
    for i in range(8): a(f'v_pk_add_f32 {vr(F+2*i,2)}, {vr(F+2*i,2)}, {vr(tmp,2)} op_sel_hi:[1,0]')
    a(f'v_pk_mul_f32 {vr(D,2)}, {vr(F,2)}, {vr(F,2)}\nv_pk_mul_f32 {vr(D+2,2)}, {vr(F+2,2)}, {vr(F+2,2)}')
    for i in range(2, 8): a(f'v_pk_fma_f32 {vr(D+2*(i&1),2)}, {vr(F+2*i,2)}, {vr(F+2*i,2)}, {vr(D+2*(i&1),2)}')
    a(f'''v_pk_add_f32 {vr(D,2)}, {vr(D,2)}, {vr(D+2,2)}
v_cvt_pk_bf16_f32 v{tmp}, v{tmp}, v{tmp}
v_add_f32 v{tmp+2}, v{D}, v{D+1}
v_lshlrev_b32 v{tmp}, 16, v{tmp}          ; -bf16(mean)''')
    red32l(tmp+2, tmp+3)
    a(f'''v_mul_f32 v{tmp+2}, 0x3b000000, v{tmp+2}
s_waitcnt lgkmcnt(0)
v_cvt_pk_bf16_f32 v{tmp+2}, v{tmp+2}, v{tmp+2}
v_lshlrev_b32 v{F}, 16, v{tmp+4}
v_lshlrev_b32 v{tmp+2}, 16, v{tmp+2}
v_and_b32 v{F+1}, 0xffff0000, v{tmp+4}
v_add_f32 v{tmp+2}, 0x3727c5ac, v{tmp+2}
v_lshlrev_b32 v{F+2}, 16, v{tmp+5}
v_cvt_pk_bf16_f32 v{tmp+2}, v{tmp+2}, v{tmp+2}
v_and_b32 v{F+3}, 0xffff0000, v{tmp+5}
v_lshlrev_b32 v{tmp+2}, 16, v{tmp+2}
v_sqrt_f32 v{tmp+2}, v{tmp+2}
v_pk_add_f32 {vr(F,2)}, {vr(F,2)}, {vr(tmp,2)} op_sel_hi:[1,0]
v_pk_add_f32 {vr(F+2,2)}, {vr(F+2,2)}, {vr(tmp,2)} op_sel_hi:[1,0]
v_cvt_pk_bf16_f32 v{tmp+2}, v{tmp+2}, v{tmp+2}
v_cvt_pk_bf16_f32 v{tmp+4}, v{F}, v{F+1}
v_lshlrev_b32 v{tmp+2}, 16, v{tmp+2}
v_cvt_pk_bf16_f32 v{tmp+5}, v{F+2}, v{F+3}
v_rcp_f32 v{tmp+2}, v{tmp+2}
v_lshlrev_b32 v{F}, 16, v{tmp+4}
v_and_b32 v{F+1}, 0xffff0000, v{tmp+4}
v_lshlrev_b32 v{F+2}, 16, v{tmp+5}
v_and_b32 v{F+3}, 0xffff0000, v{tmp+5}
v_pk_mul_f32 {vr(F,2)}, {vr(F,2)}, {vr(tmp+2,2)} op_sel_hi:[1,0]
v_pk_mul_f32 {vr(F+2,2)}, {vr(F+2,2)}, {vr(tmp+2,2)} op_sel_hi:[1,0]
v_cvt_pk_bf16_f32 v{tmp+4}, v{F}, v{F+1}
v_cvt_pk_bf16_f32 v{tmp+5}, v{F+2}, v{F+3}
ds_write_b64 v3, {vr(tmp+4,2)}''')
    BA = v('BA', 64, 4); BB = v('BB', 64, 4); ACC = v('ACC', 8, 4)
    G = F
    a(f'''s_lshl_b32 s3, s4, 2
s_add_u32 s3, s3, {FL}
v_mov_b32 v{vFLW}, s3
v_mov_b32 v{vONE}, 1
v_lshrrev_b32 v1, 2, v0           ; l>>2
v_and_b32 v2, 3, v0               ; l&3
v_lshrrev_b32 v3, 4, v0           ; kg
v_and_b32 v7, 3, v1
v_lshl_add_u32 v7, v3, 3, v7
s_lshl_b32 s3, s4, 1
v_and_b32 v5, 7, v1
v_xor_b32 v5, s3, v5
v_lshlrev_b32 v6, 8, v7
v_lshl_add_u32 v6, v2, 3, v6
v_add_u32 v6, {LV}, v6
v_lshl_add_u32 v{vTV}, v5, 5, v6
v_xor_b32 v{vTV+1}, 32, v{vTV}
v_lshlrev_b32 v6, 4, v3           ; kg*16
v_and_b32 v4, 1, v0               ; l&1
v_mul_u32_u24 v5, {XS}, v4
v_add_u32 v5, v5, v6
v_add_u32 v{vAX}, {XN}, v5
s_lshl_b32 s3, s4, 7
s_add_u32 s3, s3, s59
v_mul_u32_u24 v5, s61, v4
v_add3_u32 v5, s3, v5, v6
v_bfe_u32 v4, v0, 1, 1
v_lshl_add_u32 v{vP1}, v4, 6, v5
v_cmp_eq_u32 s[64:65], 1, v4''')
    for ks in range(4): a(f'ds_read_b128 {vr(BB+4*ks,4)}, v{vAX} offset:{64*ks}')
    for i in range(8): a(f'v_mov_b32 v{ACC+i}, 0')
    a(f'v_mov_b32 v{tmp+7}, s60')
    spin(vFL, F_LD-FL, tmp, 1)
    T(3)
    for ks in range(4):
        for u in range(2):
            r = BA+8*ks+4*u
            a(f'ds_read_b64_tr_b16 {vr(r,2)}, v{vTV+u} offset:{LW1-LV+8192*ks}\nds_read_b64_tr_b16 {vr(r+2,2)}, v{vTV+u} offset:{LW1-LV+8192*ks+1024}')
    for i in range(8):
        ks, u = i >> 1, i & 1
        a(f's_waitcnt lgkmcnt({14-2*i})')
        a(f'v_mfma_f32_16x16x32_bf16 {vr(ACC+4*u,4)}, {vr(BA+4*i,4)}, {vr(BB+4*ks,4)}, {vr(ACC+4*u,4)}')
    setflag(F_W1F)
    for i in range(4): a(f'v_cndmask_b32 v{ACC+i}, v{ACC+i}, v{ACC+4+i}, s[64:65]')
    for i in range(4): a(f'v_add_u32 v{ACC+i}, 0x80, v{ACC+i}')
    for i in range(4): a(f'v_perm_b32 v{ACC+i}, v{ACC+i}, v{tmp+7}, s{20+i}')
    a(f's_mov_b32 exec_lo, 0x000f000f\ns_mov_b32 exec_hi, 0x000f000f\nbuffer_store_dwordx4 {vr(ACC,4)}, v{vP1}, s[44:47], 0 offen sc0')
    vGX = v('GX'); XG = v('XG', 2, 2)
    xld = f'buffer_load_dwordx2 {vr(XG,2)}, v{vGX}, s[44:47], 0 offen sc1'
    a(f'''s_mov_b64 exec, -1
s_lshl_b32 s3, s5, 8
s_add_u32 s3, s3, {EX}
v_and_b32 v4, 31, v0
v_lshlrev_b32 v4, 3, v4
v_add_u32 v{vGX}, s3, v4
{xld}''')
    T(4)
    a(f'''v_lshrrev_b32 v1, 2, v0           ; l>>2
v_and_b32 v2, 3, v0               ; l&3
v_lshrrev_b32 v3, 4, v0           ; kg
v_and_b32 v4, 15, v0              ; n
v_bfe_u32 v5, v0, 3, 2
v_xor_b32 v5, s4, v5
v_lshlrev_b32 v5, 5, v5
v_and_b32 v7, 3, v1
v_lshl_add_u32 v7, v3, 3, v7
v_lshl_add_u32 v5, v7, 7, v5
v_lshl_add_u32 v5, v2, 3, v5
v_add_u32 v{vTR}, {LWO}, v5
s_lshl_b32 s3, s4, 14
v_lshlrev_b32 v6, 8, v4
v_add_u32 v6, s3, v6
v_xor_b32 v5, v3, v4
v_lshl_add_u32 v{vKA}, v5, 4, v6
v_xor_b32 v{vKA+1}, 64, v{vKA}
v_xor_b32 v{vKA+2}, 0x80, v{vKA}
v_xor_b32 v{vKA+3}, 0xc0, v{vKA}
v_lshlrev_b32 v6, 4, v3           ; kg*16
v_and_b32 v{tmp+3}, 1, v0         ; l&1
v_and_b32 v5, 1, v1               ; (l>>2)&1
v_mul_u32_u24 v7, {OS}, v{tmp+3}
v_add_u32 v7, v7, v6
v_add_u32 v{vAO}, {LO}, v7
v_lshl_add_u32 v7, v{tmp+3}, 7, v6
v_add_u32 v{vAH}, {LH}, v7
v_mul_u32_u24 v7, {QS}, v2
v_add_u32 v7, v7, v6
v_add_u32 v{vQB}, {LQ}, v7
v_mul_u32_u24 v7, {PS_}, v2
v_add_u32 v7, v7, v6
v_add_u32 v{vPB}, {LP}, v7
v_and_b32 v{tmp+1}, 1, v3         ; kg&1
s_lshr_b32 s3, s58, 3
s_lshl_b32 s3, s3, 13
s_and_b32 s7, s58, 7
s_lshl_b32 s7, s7, 6
s_add_u32 s3, s3, s7
s_add_u32 s3, s3, {EF}
v_lshlrev_b32 v7, 9, v1
v_lshl_add_u32 v7, v2, 4, v7
v_add_u32 v{vGR}, s3, v7
s_lshl_b32 s3, s58, 7
s_add_u32 s3, s3, {EH}
v_lshlrev_b32 v7, 6, v5
v_lshl_add_u32 v7, v2, 4, v7
v_lshl_add_u32 v7, v{tmp+1}, 3, v7
v_add_u32 v{vPH}, s3, v7
s_sub_u32 s7, s6, 4
s_cselect_b32 s7, 0, s7
s_lshl_b32 s3, s7, 9
s_add_u32 s3, s3, {EH}
v_lshlrev_b32 v7, 3, v0
v_add_u32 v{vGH}, s3, v7
v_bfe_u32 v7, v0, 3, 1
v_lshlrev_b32 v7, 7, v7
v_lshl_add_u32 v7, v3, 5, v7
v_and_b32 v{tmp+5}, 7, v0
v_lshl_add_u32 v7, v{tmp+5}, 2, v7
v_add_u32 v{vHW}, {LH}, v7
s_lshr_b32 s7, s6, 4
s_lshl_b32 s3, s5, 1
s_add_u32 s3, s3, s7
s_lshl_b32 s3, s3, 4
s_add_u32 s3, s3, s4
s_lshl_b32 s3, s3, 9
s_add_u32 s3, s3, {EQ}
v_lshrrev_b32 v{tmp+2}, 5, v0     ; l>>5
v_and_b32 v5, 31, v0
v_lshlrev_b32 v7, 11, v{tmp+2}
v_lshl_add_u32 v7, v5, 4, v7
v_add_u32 v{vGQ}, s3, v7
s_mul_i32 s3, s4, {QS}
s_add_u32 s3, s3, {LQ}
v_lshlrev_b32 v7, 2, v{tmp+2}
v_lshl_add_u32 v7, v5, 3, v7
v_add_u32 v{vQW}, s3, v7
v_bfe_u32 v6, v0, 3, 1
v_and_b32 v7, 7, v0
s_lshr_b32 s3, s6, 3
s_lshl_b32 s7, s5, 2
s_add_u32 s66, s3, s7             ; hq
s_lshl_b32 s3, s66, 14
s_lshl_b32 s7, s4, 7
s_add_u32 s3, s3, s7
s_add_u32 s3, s3, {EO}
v_lshlrev_b32 v5, 13, v6
v_lshl_add_u32 v5, v3, 11, v5
v_lshl_add_u32 v5, v7, 4, v5
v_add_u32 v{vGO}, s3, v5
s_lshl_b32 s3, s4, 6
s_add_u32 s3, s3, {LO}
v_mul_u32_u24 v5, {OS}, v6
v_lshl_add_u32 v5, v7, 3, v5
v_lshl_add_u32 v5, v{tmp+1}, 2, v5
v_lshl_add_u32 v5, v{tmp+2}, 1, v5
v_add_u32 v{vOW}, s3, v5
; o publish
s_lshl_b32 s3, s5, 16
s_lshl_b32 s7, s6, 9
s_add_u32 s3, s3, s7
s_lshl_b32 s7, s4, 7
s_add_u32 s3, s3, s7
s_add_u32 s3, s3, {EO}
v_lshlrev_b32 v5, 14, v2
v_and_b32 v6, 1, v1
v_lshl_add_u32 v5, v6, 6, v5
v_lshl_add_u32 v5, v3, 4, v5
v_add_u32 v{vPO}, s3, v5
s_lshl_b32 s3, s4, 7
s_add_u32 s3, s3, {LP}
v_mul_u32_u24 v5, {PS_}, v2
v_and_b32 v6, 3, v1
v_lshl_add_u32 v5, v6, 5, v5
v_lshl_add_u32 v5, v3, 3, v5
v_add_u32 v{vPW}, s3, v5
v_lshlrev_b32 v5, 2, v2
v_add_u32 v{vMX}, {MX}, v5
s_and_b32 s3, s6, 7
s_lshl_b32 s3, s3, 6
s_add_u32 s3, s3, s66
s_lshl_b32 s66, s3, 9             ; s slot
s_add_u32 s7, s6, 28
s_and_b32 s7, s7, 31
s_lshl_b32 s67, s5, 6
s_add_u32 s7, s7, s67
s_add_u32 s7, s7, 32
s_lshl_b32 s67, s7, 9             ; f slot
s_lshl_b32 s3, s4, 7
s_add_u32 s3, s3, {ES}
v_lshlrev_b32 v5, 5, v3
v_lshl_add_u32 v5, v{tmp+3}, 4, v5
v_add_u32 v{vPS}, s3, v5''')
    for i in range(64): a(f'v_mov_b32 v{BB+i}, 0')
    RB()
    a('s_movk_i32 s34, 0x1000')
    HG = v('HG', 4, 4)
    a(f's_cmp_lg_u32 s4, 0\ns_cselect_b32 s58, -1, s58\ns_cmp_lt_i32 s58, 0\ns_cbranch_scc1 L_nored0\nbuffer_load_dwordx4 {vr(HG,4)}, v{vGR}, s[44:47], 0 offen sc1\nL_nored0:')
    qit = [(G, vGQ, '0', 0, 'P'), (G+4, vGQ, 's34', 0, 'P')]
    for it in qit: a(f'buffer_load_dwordx4 {vr(it[0],4)}, v{it[1]}, s[44:47], {it[2]} offen sc1')
    a(f'''s_mov_b32 s7, {xtries}
s_waitcnt vmcnt(2)
L_px:
v_cmp_ne_u32 vcc, s60, v{XG+1}
s_cbranch_vccz L_px_d
{xld}
s_sub_u32 s7, s7, 1
s_waitcnt vmcnt(0)
s_cbranch_scc0 L_px
s_mov_b32 s63, -1
L_px_d:
v_cmp_ne_u32 vcc, s63, v{XG}
s_cmp_eq_u64 vcc, 0
s_cselect_b32 s62, {1 if forceglobal else 0}, 1
s_cmp_eq_u32 s62, 0
s_cbranch_scc1 L_p1done
s_mov_b32 exec_lo, 0x000f000f
s_mov_b32 exec_hi, 0x000f000f
buffer_store_dwordx4 {vr(ACC,4)}, v{vP1}, s[44:47], 0 offen sc1
s_mov_b64 exec, -1
L_p1done:''')
    ppoll(qit, 44, 'pq', issued=True, tp=tmp)
    T(5)
    if diag and keep and '#q' in keep: C(14)
    for i in range(8): a(f'v_and_b32 v{G+i}, 0xffffff00, v{G+i}')
    a(f'''v_pk_add_f32 {vr(G,2)}, {vr(G,2)}, {vr(G+4,2)}
v_pk_add_f32 {vr(G+2,2)}, {vr(G+2,2)}, {vr(G+6,2)}
v_permlane32_swap_b32 v{G}, v{G+2}
v_permlane32_swap_b32 v{G+1}, v{G+3}
v_pk_add_f32 {vr(G,2)}, {vr(G,2)}, {vr(G+2,2)}
v_cvt_pk_bf16_f32 v{G}, v{G}, v{G+1}
ds_write_b32 v{vQW}, v{G}
s_waitcnt lgkmcnt(0)''')
    setflag(F_S2)
    a('; ---- h = silu(gate) * up for 16 columns, published for all groups')
    a('s_cmp_lt_i32 s58, 0\ns_cbranch_scc1 L_nored')
    ppoll([(HG, vGR, '0', 0, 'P')], 44, 'pr', issued=True, tp=tmp)
    for i in range(4): a(f'v_and_b32 v{HG+i}, 0xffffff00, v{HG+i}')
    for i in range(4): a(f'v_add_f32_dpp v{HG+i}, v{HG+i}, v{HG+i} row_ror:8 row_mask:0xf bank_mask:0xf')
    a(f'''v_permlane16_swap_b32 v{HG}, v{HG+2}
v_permlane16_swap_b32 v{HG+1}, v{HG+3}
v_pk_add_f32 {vr(HG,2)}, {vr(HG,2)}, {vr(HG+2,2)}
v_cvt_pk_bf16_f32 v{HG}, v{HG}, v{HG+1}
v_mov_b32 v{HG+1}, v{HG}
v_permlane32_swap_b32 v{HG}, v{HG+1}
v_lshlrev_b32 v{tmp}, 16, v{HG}
v_and_b32 v{tmp+1}, 0xffff0000, v{HG}
v_mul_f32 v{tmp+2}, 0xbfb8aa3b, v{tmp}
v_mul_f32 v{tmp+3}, 0xbfb8aa3b, v{tmp+1}
v_exp_f32 v{tmp+2}, v{tmp+2}
v_exp_f32 v{tmp+3}, v{tmp+3}
v_lshlrev_b32 v{HG+2}, 16, v{HG+1}
v_add_f32 v{tmp+2}, 1.0, v{tmp+2}
v_add_f32 v{tmp+3}, 1.0, v{tmp+3}
v_rcp_f32 v{tmp+2}, v{tmp+2}
v_rcp_f32 v{tmp+3}, v{tmp+3}
v_and_b32 v{HG+3}, 0xffff0000, v{HG+1}
v_mul_f32 v{tmp}, v{tmp}, v{tmp+2}
v_mul_f32 v{tmp+1}, v{tmp+1}, v{tmp+3}
v_cvt_pk_bf16_f32 v{tmp}, v{tmp}, v{tmp+1}
v_and_b32 v{tmp+1}, 0xffff0000, v{tmp}
v_lshlrev_b32 v{tmp}, 16, v{tmp}
v_mul_f32 v{tmp}, v{tmp}, v{HG+2}
v_mul_f32 v{tmp+1}, v{tmp+1}, v{HG+3}
v_cvt_pk_bf16_f32 v{tmp}, v{tmp}, v{tmp+1}
v_mov_b32 v{tmp+1}, s60
s_mov_b32 exec_lo, 0x00ff00ff
s_mov_b32 exec_hi, 0
buffer_store_dwordx2 {vr(tmp,2)}, v{vPH}, s[44:47], 0 offen sc1
s_mov_b64 exec, -1
L_nored:''')
    spin(vFL, F_S2-FL, tmp)
    for t in range(4):
        a(f's_mov_b32 exec_lo, {0x000f000f << (4*t)}\ns_mov_b32 exec_hi, {0x000f000f << (4*t)}')
        for ks in range(4): a(f'ds_read_b128 {vr(BB+16*t+4*ks,4)}, v{vQB} offset:{64*ks}')
    a('s_mov_b64 exec, -1')
    for i in range(4): a(f'v_mov_b32 v{ACC+i}, 0')
    spin(vFL, F_LD+4-FL, tmp, 1)
    T(6)
    for t in range(4):
        for ks in range(4): a(f'ds_read_b128 {vr(BA+16*t+4*ks,4)}, v{vKA+ks} offset:{4096*t}')
    for i in range(16):
        a(f's_waitcnt lgkmcnt({15-i})')
        a(f'v_mfma_f32_16x16x32_bf16 {vr(ACC,4)}, {vr(BA+4*i,4)}, {vr(BB+4*i,4)}, {vr(ACC,4)}')
    S = v('S', 4, 4); M = v('M'); L_ = v('L')
    def rne4(src, dst, t):
        a(f'''v_cvt_pk_bf16_f32 v{t}, v{src}, v{src+1}
v_cvt_pk_bf16_f32 v{t+1}, v{src+2}, v{src+3}
v_lshlrev_b32 v{dst}, 16, v{t}
v_and_b32 v{dst+1}, 0xffff0000, v{t}
v_lshlrev_b32 v{dst+2}, 16, v{t+1}
v_and_b32 v{dst+3}, 0xffff0000, v{t+1}''')
    hld = f'buffer_load_dwordx2 {vr(HG,2)}, v{vGH}, s[44:47], 0 offen sc1'
    for i in range(16, 24): a(f'v_mov_b32 v{BB+i}, 0')
    rne4(ACC, S, tmp)
    for i in range(4): a(f'v_mul_f32 v{S+i}, 0x3db504f3, v{S+i}')
    rne4(S, S, tmp)
    def xl(op, r, t):
        a(f'''{op}_dpp v{r}, v{r}, v{r} row_ror:4 row_mask:0xf bank_mask:0xf
{op}_dpp v{r}, v{r}, v{r} row_ror:8 row_mask:0xf bank_mask:0xf
v_mov_b32 v{t}, v{r}
v_permlane16_swap_b32 v{r}, v{t}
{op} v{r}, v{r}, v{t}
v_mov_b32 v{t}, v{r}
v_permlane32_swap_b32 v{r}, v{t}
{op} v{r}, v{r}, v{t}''')
    a(f'v_max3_f32 v{M}, v{S}, v{S+1}, v{S+2}\nv_max_f32 v{M}, v{M}, v{S+3}')
    xl('v_max_f32', M, tmp)
    a(f'''s_lshl_b32 s3, s4, 4
v_add_u32 v{tmp+4}, s3, v{vMX}
s_mov_b64 exec, 15
ds_write_b32 v{tmp+4}, v{M}
s_mov_b64 exec, -1
s_waitcnt lgkmcnt(0)''')
    setflag(F_S3)
    for i in range(24, 64): a(f'v_mov_b32 v{BB+i}, 0')
    spin(vFL, F_S3-FL, tmp)
    a(f'''ds_read2_b32 {vr(tmp,2)}, v{vMX} offset0:0 offset1:4
ds_read2_b32 {vr(tmp+2,2)}, v{vMX} offset0:8 offset1:12
s_waitcnt lgkmcnt(0)
v_max3_f32 v{M}, v{tmp}, v{tmp+1}, v{tmp+2}
v_max_f32 v{M}, v{M}, v{tmp+3}''')
    for i in range(4): a(f'v_sub_f32 v{S+i}, v{S+i}, v{M}')
    for i in range(4): a(f'v_mul_f32 v{S+i}, 0x3fb8aa3b, v{S+i}')
    for i in range(4): a(f'v_exp_f32 v{S+i}, v{S+i}')
    a(f'''v_add_f32 v{L_}, v{S}, v{S+1}
v_add_f32 v{tmp}, v{S+2}, v{S+3}
v_cvt_pk_bf16_f32 v{tmp+2}, v{S}, v{S+1}
v_cvt_pk_bf16_f32 v{tmp+3}, v{S+2}, v{S+3}
v_add_f32 v{L_}, v{L_}, v{tmp}
ds_write_b64 v{vPW}, {vr(tmp+2,2)}''')
    xl('v_add_f32', L_, tmp)
    a(f'''s_mov_b64 exec, 15
ds_write_b32 v{tmp+4}, v{L_} offset:{LS-MX}
s_mov_b64 exec, -1''')
    a('s_waitcnt lgkmcnt(0)')
    setflag(F_S4)
    HA = X; WD = D
    for ks in range(2): a(f'ds_read_b64_tr_b16 {vr(WD+4*ks,2)}, v{vTR} offset:{LWD-LWO+4096*ks}\nds_read_b64_tr_b16 {vr(WD+4*ks+2,2)}, v{vTR} offset:{LWD-LWO+4096*ks+512}')
    for i in range(8): a(f'v_mov_b32 v{ACC+i}, 0')
    spin(vFL, F_S4-FL, tmp)
    OG = S; RL = v('RL', 2, 2)
    a(f'''ds_read2_b32 {vr(tmp,2)}, v{vMX} offset0:16 offset1:20
ds_read2_b32 {vr(tmp+2,2)}, v{vMX} offset0:24 offset1:28''')
    for u in range(2):
        a(f's_mov_b32 exec_lo, {0x000f000f << (4*u)}\ns_mov_b32 exec_hi, {0x000f000f << (4*u)}')
        for ks in range(8): a(f'ds_read_b128 {vr(BB+32*u+4*ks,4)}, v{vPB} offset:{64*ks}')
    a(f'''s_mov_b64 exec, -1
s_waitcnt lgkmcnt(0)
v_add_f32 v{tmp}, v{tmp}, v{tmp+1}
v_add_f32 v{tmp+2}, v{tmp+2}, v{tmp+3}
v_add_f32 v{tmp}, v{tmp}, v{tmp+2}
v_rcp_f32 v{RL}, v{tmp}
v_log_f32 v{tmp}, v{tmp}
v_mov_b32 v{tmp+1}, 0x3fb8aa3b
v_fma_f32 v{OG+2}, v{M}, v{tmp+1}, v{tmp}
v_mov_b32 v{OG+3}, s60''')
    a(hld)
    T(7)
    def pv(k0, k1):
        n = 2*(k1-k0); dep = 4
        items = [(ks, u) for ks in range(k0, k1) for u in range(2)]
        def mf(i):
            ks, u = items[i]
            a(f'v_mfma_f32_16x16x32_bf16 {vr(ACC,4)}, {vr(BA+8*ks+4*u,4)}, {vr(BB+32*u+4*ks,4)}, {vr(ACC,4)}')
        for i, (ks, u) in enumerate(items):
            r = BA+8*ks+4*u
            a(f'ds_read_b64_tr_b16 {vr(r,2)}, v{vTV+u} offset:{8192*ks}\nds_read_b64_tr_b16 {vr(r+2,2)}, v{vTV+u} offset:{8192*ks+1024}')
            if i >= dep: a(f's_waitcnt lgkmcnt({2*dep})'); mf(i-dep)
        for i in range(max(n-dep, 0), n):
            a(f's_waitcnt lgkmcnt({2*(n-1-i)})'); mf(i)
    if vsplit:
        PAD()
        spin(vFL, F_LD+8-FL, tmp, 1)
        pv(0, vs)
    PAD()
    a('s_barrier                          ; B1')
    T(8)
    pv(vs if vsplit else 0, 8)
    PAD()
    a(f'''s_mov_b32 exec_lo, 0x00ff00ff
s_mov_b32 exec_hi, 0x00ff00ff
s_cmp_eq_u32 s62, 0
v_pk_mul_f32 {vr(ACC,2)}, {vr(ACC,2)}, {vr(RL,2)} op_sel_hi:[1,0]
v_pk_mul_f32 {vr(ACC+2,2)}, {vr(ACC+2,2)}, {vr(RL,2)} op_sel_hi:[1,0]
v_cvt_pk_bf16_f32 v{OG}, v{ACC}, v{ACC+1}
v_cvt_pk_bf16_f32 v{OG+1}, v{ACC+2}, v{ACC+3}''')
    st2(f'buffer_store_dwordx4 {vr(OG,4)}, v{vPO}, s[44:47], 0 offen', 'po_st')
    a('s_mov_b64 exec, -1')
    T(9)
    a(f'''s_waitcnt vmcnt(1)
L_ph:
v_cmp_ne_u32 vcc, s60, v{HG+1}
s_cbranch_vccz L_ph_d
{hld}
s_sub_u32 s68, s68, 1
s_waitcnt vmcnt(0)
s_cbranch_scc0 L_ph
s_mov_b32 s68, 0
L_ph_d:
ds_write_b32 v{vHW}, v{HG}''')
    for ks in range(2): a(f'ds_read_b128 {vr(HA+4*ks,4)}, v{vAH} offset:{64*ks}')
    for k2 in range(2): a(f's_waitcnt lgkmcnt({1-k2})\nv_mfma_f32_16x16x32_bf16 {vr(ACC+4,4)}, {vr(WD+4*k2,4)}, {vr(HA+4*k2,4)}, {vr(ACC+4,4)}')
    PAD()
    a('s_mov_b32 exec_lo, 0x00030003\ns_mov_b32 exec_hi, 0x00030003\ns_cmp_eq_u32 s62, 0')
    for i in range(4): a(f'v_add_u32 v{ACC+4+i}, 0x80, v{ACC+4+i}')
    for i in range(4): a(f'v_perm_b32 v{ACC+4+i}, v{ACC+4+i}, v{OG+3}, s{20+i}')
    st2(f'buffer_store_dwordx4 {vr(ACC+4,4)}, v{vPS}, s[44:47], s67 offen', 'pfs')
    a('s_mov_b64 exec, -1')
    oit = [(G+4*i, vGO, '0', 512*i, [3]) for i in range(4)]
    if osleep == 'w': a('s_waitcnt vmcnt(0)')
    elif osleep: a(f's_sleep {osleep}')
    for it in oit: a(f'buffer_load_dwordx4 {vr(it[0],4)}, v{it[1]}, s[44:47], 0 offen offset:{it[3]} sc1')
    for i in range(4): a(f'v_mov_b32 v{ACC+i}, 0')
    wort = lambda ks: f'ds_read_b64_tr_b16 {vr(BB+4*ks,2)}, v{vTR} offset:{4096*ks}\nds_read_b64_tr_b16 {vr(BB+4*ks+2,2)}, v{vTR} offset:{4096*ks+512}'
    if b2a:
        a('s_barrier                          ; B2a')
        for ks in range(4): a(wort(ks))
    PAD()
    RB()
    ppoll(oit, 44, 'po', issued=True)
    T(10)
    if not (diag and keep and '#q' in keep): C(14)
    Wt = HG; U = D; Aa = v('Aa', 6, 2)
    a(f'''v_max3_f32 v{M}, v{G+2}, v{G+6}, v{G+10}
v_max_f32 v{M}, v{M}, v{G+14}
v_mov_b32 v{tmp}, v{M}''')
    for i in range(2): a(f'v_lshlrev_b32 v{U+4*i}, 16, v{G+4*i}')
    a(f'v_permlane16_swap_b32 v{M}, v{tmp}\nv_max_f32 v{M}, v{M}, v{tmp}\nv_mov_b32 v{tmp}, v{M}')
    for i in range(2, 4): a(f'v_lshlrev_b32 v{U+4*i}, 16, v{G+4*i}')
    a(f'v_permlane32_swap_b32 v{M}, v{tmp}\nv_max_f32 v{M}, v{M}, v{tmp}')
    for i in range(4): a(f'v_sub_f32 v{Wt+i}, v{G+4*i+2}, v{M}')
    for i in range(4): a(f'v_exp_f32 v{Wt+i}, v{Wt+i}\nv_and_b32 v{U+4*i+1}, 0xffff0000, v{G+4*i}\nv_lshlrev_b32 v{U+4*i+2}, 16, v{G+4*i+1}\nv_and_b32 v{U+4*i+3}, 0xffff0000, v{G+4*i+1}')
    PAD()
    sel = lambda i: ('op_sel_hi:[1,0,1]' if i % 2 == 0 else 'op_sel:[0,1,0] op_sel_hi:[1,1,1]')
    for e in (0, 2): a(f'v_pk_mul_f32 {vr(Aa+e,2)}, {vr(U+e,2)}, {vr(Wt,2)} op_sel_hi:[1,0]')
    a(f'v_pk_add_f32 {vr(Aa+4,2)}, {vr(Wt,2)}, {vr(Wt+2,2)}')
    for i in range(1, 4):
        for e in (0, 2): a(f'v_pk_fma_f32 {vr(Aa+e,2)}, {vr(U+4*i+e,2)}, {vr(Wt+(i&2),2)}, {vr(Aa+e,2)} {sel(i)}')
        if i == 1: a(f'v_add_f32 v{Aa+4}, v{Aa+4}, v{Aa+5}')
        if i == 2: a(f'v_mov_b32 v{Aa+5}, v{Aa+4}')
    a(f'''v_permlane32_swap_b32 v{Aa+4}, v{Aa+5}
v_permlane32_swap_b32 v{Aa}, v{Aa+1}
v_permlane32_swap_b32 v{Aa+2}, v{Aa+3}
v_add_f32 v{Aa+4}, v{Aa+4}, v{Aa+5}
v_add_f32 v{Aa}, v{Aa}, v{Aa+1}
v_add_f32 v{Aa+2}, v{Aa+2}, v{Aa+3}
v_mov_b32 v{Aa+5}, v{Aa+4}
v_permlane16_swap_b32 v{Aa}, v{Aa+2}
v_permlane16_swap_b32 v{Aa+4}, v{Aa+5}
v_add_f32 v{Aa+4}, v{Aa+4}, v{Aa+5}
v_add_f32 v{Aa}, v{Aa}, v{Aa+2}
v_rcp_f32 v{Aa+4}, v{Aa+4}
v_mul_f32 v{Aa}, v{Aa}, v{Aa+4}
v_cvt_pk_bf16_f32 v{Aa}, v{Aa}, v{Aa}
ds_write_b16 v{vOW}, v{Aa}''')
    PAD()
    a('s_waitcnt lgkmcnt(0)\ns_barrier                          ; B2')
    T(11)
    for ks in range(4):
        a(f'ds_read_b128 {vr(BA+4*ks,4)}, v{vAO} offset:{64*ks}')
        if not b2a: a(wort(ks))
    for ks in range(4):
        a(f's_waitcnt lgkmcnt({3-ks if b2a else 9-3*ks})')
        a(f'v_mfma_f32_16x16x32_bf16 {vr(ACC,4)}, {vr(BB+4*ks,4)}, {vr(BA+4*ks,4)}, {vr(ACC,4)}')
    PAD()
    a('s_mov_b32 exec_lo, 0x00030003\ns_mov_b32 exec_hi, 0x00030003')
    for i in range(4): a(f'v_perm_b32 v{ACC+i}, v{ACC+i}, v{OG+3}, s{20+i}')
    a(f'buffer_store_dwordx4 {vr(ACC,4)}, v{vPS}, s[44:47], s66 offen sc1')
    if b3: a('s_waitcnt vmcnt(0)\ns_barrier                          ; B3')
    if wb == 'all': a('s_cmp_lg_u32 s4, 0\ns_cbranch_scc1 L_nowb\nbuffer_wbl2 sc1\nL_nowb:')
    if wb == 'j0': a('s_or_b32 s3, s4, s6\ns_cbranch_scc1 L_nowb\nbuffer_wbl2 sc1\nL_nowb:')
    T(12)
    if diag:
        T(13)
        if diag != 'amp': a(f's_mov_b32 s{TSB+30}, 0')
        a('s_add_u32 s4, s4, 1')
    else: a('s_endpgm')
    if diag: a('L_fin:')
    if diag == 'ws': a(ts_store(16, 30, 4, srd=36))
    if diag == 'amp':
        A_, B_, sign, wave, K = amp[:5]
        if len(amp) > 5: a(f's_cmp_lg_u32 s5, {amp[5]}\ns_cbranch_scc1 L_end')
        ia, ib = NAMES.index(A_), NAMES.index(B_)
        a(f's_cmp_lg_u32 s4, {wave}\ns_cbranch_scc1 L_end\ns_waitcnt lgkmcnt(0)\ns_sub_u32 s3, s{TSB+2*ib}, s{TSB+2*ia}')
        if sign < 0: a('s_sub_u32 s3, 2000, s3')
        a(f'''s_min_u32 s3, s3, 4000
s_mul_i32 s3, s3, {K}
s_memrealtime s[34:35]
s_waitcnt lgkmcnt(0)
s_add_u32 s3, s3, s34
L_amp:
s_sleep 2
s_memrealtime s[34:35]
s_waitcnt lgkmcnt(0)
s_sub_u32 s7, s34, s3
s_cmp_lt_i32 s7, 0
s_cbranch_scc1 L_amp''')
    if diag: a('L_end:\ns_endpgm')
    a(kdesc(KN+'_kernel', v.n))
    return hdr_ref + pad(a.text())

if __name__ == '__main__':
    open('kfinal.s', 'w').write(gen(None))
```

```python
import sys
from asmlib import *
from hz import pad

EPOCH=0; EX=0x2000; EH=0x4000; EQ=0x10000; EF=0x30000; DUMMY=0x4C000; EO=0x80000; ES=0x100000; WSZ=0x180000
LK=0; LV=65536; LW1=98304; LWO=131072; LWD=147456; MB=155648
XS=1088; QS=320; PS_=576; OS=320
XN=MB; LQ=MB+2304; LP=MB+3584; FL=MB+6144; LO=MB+6400; LH=MB+7168; MX=MB+7424; LS=MB+7488
F_W1F, F_S2, F_S3, F_S4, F_G, F_LD, F_MODE = [FL+16*i for i in range(7)]
LDS_TOTAL=163840
TAGINC=0x9E3779B9
BUD=1000000


DOC = """;
;
;   phase 1  128 rows x 128 columns of wq (j < 16: q head 4h + (j&3), row quarter j>>2) or of
;   w_down   64 rows x 64 columns (rows 64(j-4), columns 64h)         -> partial f
;   wo       128 rows x 64 columns (q head 4h + (j>>3), columns 64(j&7)) -> partial s
;
; Hand-offs between workgroups go through d_ws in self-validating granules: every 8/16-byte store
; carries this launch's tag (tag = word 0 of d_ws at entry + 0x9E3779B9; workgroup 0 stores the tag
; A producer relies on ordinary stores only if it has read, from all 32 workgroups of its group, a
; tagged XCC id equal to its own (all its readers then share its L2).  Without that evidence it stores
"""

ROT = dict(hj='s_add_u32 s57, s5, s6', j='s_mov_b32 s57, s6', j1='s_lshr_b32 s57, s6, 1', z='s_mov_b32 s57, 0',
  s1='s_bfe_u32 s57, s6, 0x30001', j2='s_lshr_b32 s57, s6, 2', j1h='s_lshr_b32 s57, s6, 1\ns_add_u32 s57, s57, s5',
  j1x='s_lshr_b32 s57, s6, 1\ns_xor_b32 s57, s57, s5', nj1='s_lshr_b32 s57, s6, 1\ns_sub_u32 s57, 15, s57', nj='s_sub_u32 s57, 31, s6',
  j32='s_mul_i32 s57, s6, 3\ns_lshr_b32 s57, s57, 1', j52='s_mul_i32 s57, s6, 5\ns_lshr_b32 s57, s57, 1', g='s_lshr_b32 s57, s6, 1\ns_xor_b32 s57, s57, s6',
  j72='s_mul_i32 s57, s6, 7\ns_lshr_b32 s57, s57, 1', j92='s_mul_i32 s57, s6, 9\ns_lshr_b32 s57, s57, 1', j34='s_mul_i32 s57, s6, 3\ns_lshr_b32 s57, s57, 2',
  j1h8='s_lshr_b32 s57, s6, 1\ns_lshl_b32 s3, s5, 3\ns_add_u32 s57, s57, s3', j7='s_mul_i32 s57, s6, 7', j9='s_mul_i32 s57, s6, 9', j5='s_mul_i32 s57, s6, 5')

class V:
    def __init__(self, start=1): self.n = start; self.m = {}
    def __call__(self, name, cnt=1, align=1):
        if name in self.m: return self.m[name]
        self.n = (self.n + align-1)//align*align
        self.m[name] = self.n; self.n += cnt
        return self.m[name]
def vr(a, n): return f'v[{a}:{a+n-1}]'
NAMES = 'start,karg,x,w1,pub1,q,kready,sm,b1,pubo,ogot,b2,pubs,fin,#c1,#c2'.split(',')

def gen(diag=None, keep=None, NF=22, NFE=22, gE=8, wt=4, kf=1, vs=6, b2a=True, wb=None, g0=None, lp={'po_st':'sc0','pfs':'sc0','p1':'sc0'}, qsleep=0, early='', cprio=2, lprio=0, b0late=True, b3=True, jit=0, ft=True, rot='j1', pw='', osleep=0, fsleep=0, xsleep=4, spin_sleep=1,
        pre='', vsplit=True, forceglobal=False, pol='nt', amp=None, cpf=False, pads=False, tlb=False, skip=(), p1pol='sc1', expol='', wide=None, xtries=3):
    if amp: diag = 'amp'; keep = [amp[0], amp[1]]
    a = A()
    hdr_ref = open('cdna_kernels/%s.s.ref' % KN).read().split('; Override')[0]
    extra = f'; ts nwg=256 nwave=5 names={",".join(NAMES)}' if diag == 'ws' else ''
    a(header(f'; @launch grid=(256,1,1) block=(320,1,1) lds={LDS_TOTAL}', extra + ('\n' if extra else '') + DOC.rstrip('\n')))
    a(kstart(KN+'_kernel'))
    jn = [0]
    def T(i):
        if jit and i > 0:
            jn[0] += 1
            a(f'''s_mul_i32 s69, s2, 0x9E3779B1
s_mul_i32 s70, s4, 0x85EBCA77
s_add_u32 s69, s69, s70
s_add_u32 s69, s69, {(jit*7919 + jn[0]*104729) & 0x7fffffff}
s_mul_i32 s69, s69, 0xC2B2AE3D
s_lshr_b32 s69, s69, 24
s_cmp_lt_u32 s69, 200
s_cbranch_scc1 L_j{jn[0]}_d
s_sub_u32 s69, s69, 200
L_j{jn[0]}:
s_sleep 6
s_sub_u32 s69, s69, 1
s_cbranch_scc0 L_j{jn[0]}
L_j{jn[0]}_d:''')
        if not diag: return
        if keep is None or NAMES[i] in keep or i == 0: a(ts(i))
        else: a(f's_mov_b32 s{TSB+2*i}, 0')
    def C(i):
        if diag and diag != 'amp': a(f's_sub_u32 s{TSB+2*i}, {BUD}, s68\ns_mov_b32 s68, {BUD}')
    def RB():
        if diag and diag != 'amp': a(f's_mov_b32 s68, {BUD}')
    lab = [0]; padn = [0]; tailblocks = []
    def spin(flag_v, off, tmp, n=4):
        lab[0] += 1; L = f'L_sp{lab[0]}'
        if n == 4:
            rd = f'''ds_read_b128 {vr(tmp,4)}, v{flag_v} offset:{off}
s_waitcnt lgkmcnt(0)
v_and_b32 v{tmp}, v{tmp}, v{tmp+1}
v_and_b32 v{tmp+2}, v{tmp+2}, v{tmp+3}
v_and_b32 v{tmp}, v{tmp}, v{tmp+2}'''
        else:
            rd = f'ds_read_b32 v{tmp}, v{flag_v} offset:{off}\ns_waitcnt lgkmcnt(0)'
        a(f'''{L}:
{rd}
v_cmp_ne_u32 vcc, 0, v{tmp}
s_cbranch_vccnz {L}_d
s_sleep {spin_sleep}
s_sub_u32 s68, s68, 1
s_cbranch_scc0 {L}
s_mov_b32 s68, 0
{L}_d:''')
    def PAD():
        if pads:
            a(f'L_pad{padn[0]}:\ns_cbranch_execz L_pad{padn[0]+1}'); padn[0] += 1
    def ppoll(items, srd, name, issued=False, tp=None, first=0, lo=False):
        def ld(it): return f'buffer_load_dwordx4 {vr(it[0],4)}, v{it[1]}, s[{srd}:{srd+3}], {it[2]} offen offset:{it[3]} sc1'
        if not issued:
            for it in items: a(ld(it))
        def checks():
            for i, it in enumerate(items):
                m = 8+2*i; d = it[0]
                one = len(items) == 1 and (it[4] == 'P' or len(it[4]) == 1)
                dst = 'vcc' if (one and ft) else f's[{m}:{m+1}]'
                if it[4] == 'P':
                    a(f'v_perm_b32 v{tp}, v{d+1}, v{d}, s24\nv_perm_b32 v{tp+1}, v{d+3}, v{d+2}, s25\nv_or_b32 v{tp}, v{tp}, v{tp+1}\nv_cmp_ne_u32 {dst}, s60, v{tp}')
                else:
                    a(f'v_cmp_ne_u32 {dst}, s60, v{d+it[4][0]}')
                    for t in it[4][1:]: a(f'v_cmp_ne_u32 s[{16+2*i}:{17+2*i}], s60, v{d+t}')
            for i, it in enumerate(items):
                if it[4] != 'P' and len(it[4]) > 1: a(f's_or_b64 s[{8+2*i}:{9+2*i}], s[{8+2*i}:{9+2*i}], s[{16+2*i}:{17+2*i}]')
            if len(items) == 4: a('s_or_b64 s[16:17], s[8:9], s[10:11]\ns_or_b64 s[18:19], s[12:13], s[14:15]\ns_or_b64 s[16:17], s[16:17], s[18:19]')
            elif len(items) == 2: a('s_or_b64 s[16:17], s[8:9], s[10:11]')
            elif one and not ft: a('s_or_b64 s[8:9], s[8:9], s[8:9]')
            return one and ft
        full = 's_mov_b32 exec_lo, -1' if lo else 's_mov_b64 exec, -1'
        if ft:
            a(f's_branch L_{name}_w\nL_{name}_r:\ns_sub_u32 s68, s68, 1\ns_cbranch_scc1 L_{name}_x')
            if len(items) == 1: a(f's_mov_b64 exec, vcc\n{ld(items[0])}')
            else:
                for i, it in enumerate(items):
                    a(f's_mov_b64 exec, s[{8+2*i}:{9+2*i}]\ns_cbranch_execz L_{name}_s{i}\n{ld(it)}\nL_{name}_s{i}:')
            a(full)
            if first: a(f's_waitcnt vmcnt(0)')
            a(f'L_{name}_w:\ns_waitcnt vmcnt({first})')
            usevcc = checks()
            a(f's_cbranch_vccnz L_{name}_r' if usevcc else f's_cbranch_scc1 L_{name}_r')
            a(f'L_{name}_d:')
            tailblocks.append(f'L_{name}_x:\ns_mov_b32 s68, 0\ns_branch L_{name}_d')
            return
        if first: a(f's_waitcnt vmcnt({first})\ns_branch L_{name}_c')
        a(f'L_{name}:\ns_waitcnt vmcnt(0)\nL_{name}_c:')
        checks()
        a(f's_cbranch_scc0 L_{name}_d')
        for i, it in enumerate(items):
            a(f's_mov_b64 exec, s[{8+2*i}:{9+2*i}]\ns_cbranch_execz L_{name}_s{i}\n{ld(it)}\nL_{name}_s{i}:')
        a(f'''{full}
s_sub_u32 s68, s68, 1
s_cbranch_scc0 L_{name}
s_mov_b32 s68, 0
s_waitcnt vmcnt(0)
L_{name}_d:''')
    def st2(text, name, gp='sc1'):
        if ft:
            a(f's_cbranch_scc0 L_{name}_g\n{text} {lp.get(name, str())}\nL_{name}_e:')
            tailblocks.append(f'L_{name}_g:\n{text} {gp}\ns_branch L_{name}_e')
            return
        a(f's_cbranch_scc1 L_{name}_l\n{text} {gp}\ns_branch L_{name}_e\nL_{name}_l:\n{text} {lp.get(name, str())}\nL_{name}_e:')

    T(0)
    if amp and amp[2] == 'clk': a('s_memtime s[100:101]')
    a(f'''s_load_dwordx16 s[8:23], s[0:1], 0
s_load_dwordx8 s[24:31], s[0:1], 64
v_lshrrev_b32 v1, 6, v0
s_lshr_b32 s6, s2, 3              ; j
v_readfirstlane_b32 s4, v1        ; wave
s_cmp_ge_u32 s6, 32
s_cbranch_scc1 L_end0
v_and_b32 v0, 63, v0
s_and_b32 s5, s2, 7               ; h
s_cmp_lg_u32 s4, 0
s_cbranch_scc1 L_disp
; K image: 256-byte rows, 16-byte chunk c of row r at slot c ^ (r & 15) (conflict-free ds_read_b128)
v_lshrrev_b32 v1, 4, v0
v_and_b32 v5, 15, v0
v_lshlrev_b32 v6, 8, v1
v_xor_b32 v7, v1, v5
v_lshl_add_u32 v12, v7, 4, v6
s_movk_i32 s3, 0x80
v_xor_b32 v13, 64, v12
v_xor_b32 v14, s3, v12
v_xor_b32 v15, s3, v13
s_lshr_b32 s3, s6, 4
s_lshl_b32 s34, s3, 26
s_lshl_b32 s3, s5, 3
s_or_b32 s3, s3, 7
s_lshl_b32 s3, s3, 20
s_add_u32 s34, s34, s3
s_and_b32 s3, s6, 15
s_lshl_b32 s3, s3, 16
s_add_u32 s34, s34, s3
s_lshl_b32 s38, 1, 16
s_mov_b32 s39, 0x20000
{ROT[rot]}
s_and_b32 s57, s57, 15
s_lshl_b32 s57, s57, 12
s_movk_i32 s61, 0x1000
s_mov_b32 m0, {LK}
s_mov_b32 s35, {kf-1}
s_waitcnt lgkmcnt(0)
s_add_u32 s36, s10, s34
s_addc_u32 s37, s11, 0''')
    if diag and keep and 'pub1' in keep: T(4)
    a('L_k0:')
    for k in range(4): a(f'buffer_load_dwordx4 v{12+k}, s[36:39], s57 offen offset:{1024*k} {pol} lds')
    a(f'''s_add_u32 s57, s57, s61
s_bitset0_b32 s57, 16
s_add_u32 m0, m0, s61
s_sub_u32 s35, s35, 1
s_cbranch_scc0 L_k0
s_branch L_loader2
L_end0:
s_endpgm
.p2align 8
L_disp:''')
    a('s_branch L_comp\nL_loader2:')
    if lprio: a(f's_setprio {lprio}')
    T(1)
    a(f'''; x -> LDS, clear the flag words, decode the phase-1 unit (s[40:43]; no unit: 0 records, zeros land)
s_mov_b32 m0, {LP}
s_mov_b32 s64, s8
s_mov_b32 s65, s9
s_movk_i32 s66, 0x800
s_mov_b32 s67, 0x20000
v_lshlrev_b32 v7, 4, v0
buffer_load_dwordx4 v7, s[64:67], 0 offen lds
buffer_load_dwordx4 v7, s[64:67], 0 offen offset:1024 lds
v_mov_b32 v8, 0
v_lshlrev_b32 v9, 2, v0
v_add_u32 v9, {FL}, v9
ds_write_b32 v9, v8
v_lshlrev_b32 v7, 1, v1
v_xor_b32 v7, v7, v5
v_lshlrev_b32 v7, 4, v7
s_lshl_b32 s3, s5, 4
s_add_u32 s3, s3, s6
s_sub_u32 s3, s3, 16
s_lshr_b32 s58, s3, 3
s_bfe_u32 s7, s3, 0x20001
s_mulk_i32 s7, 1792
s_add_u32 s58, s58, s7
s_bitcmp0_b32 s3, 0
s_cselect_b32 s40, s20, s22
s_cselect_b32 s41, s21, s23
s_lshl_b32 s33, s5, 2
s_and_b32 s7, s6, 3
s_add_u32 s33, s33, s7
s_lshr_b32 s7, s6, 2
s_lshl_b32 s7, s7, 12
s_add_u32 s33, s33, s7
s_movk_i32 s56, 3584
s_cmp_lt_u32 s6, 16
s_cselect_b32 s58, s33, s58
s_cselect_b32 s56, 0x2000, s56
s_cselect_b32 s40, s14, s40
s_cselect_b32 s41, s15, s41
s_cselect_b32 s3, 0, s3
s_cmp_lt_u32 s3, 112
s_cselect_b32 s58, s58, 0
s_cselect_b32 s42, s56, 0
s_cselect_b32 s7, 1, 0
s_lshl_b32 s58, s58, 8
s_mulk_i32 s42, 127
s_lshl_b32 s7, s7, 8
s_add_u32 s42, s42, s7
s_add_u32 s40, s40, s58
s_addc_u32 s41, s41, 0
s_mov_b32 s43, 0x20000
s_lshl_b32 s32, s56, 2
s_sub_u32 s33, s32, 0x400         ; 4*stride-1024
s_lshl_b32 s32, s32, 2            ; 16*stride
v_mad_u32_u24 v8, v1, s56, v7
v_xor_b32 v10, 0x80, v8
v_add_u32 v9, s33, v8
v_add_u32 v10, s33, v10
v_add_u32 v10, s33, v10
v_add_u32 v11, s33, v10
s_mov_b32 m0, {LW1}
s_mov_b32 s33, 0''')
    Wc = [NF-1]
    def group(vo, srd, so='s33', waits=(1,1,1,1)):
        for k in range(4):
            if waits[k]: a(f's_waitcnt vmcnt({Wc[0]})')
            a(f'buffer_load_dwordx4 v{vo[k]}, s[{srd}:{srd+3}], {so} offen offset:{1024*k} {pol} lds')
    def loop(n, vo, srd, step, wrap=False):
        if n <= 0: return
        lab[0] += 1; L = f'L_ld{lab[0]}'
        a(f's_mov_b32 s35, {n-1}\n{L}:')
        group(vo, srd)
        a(f's_add_u32 s33, s33, {step}')
        if wrap: a('s_bitset0_b32 s33, 16')
        a(f's_add_u32 m0, m0, s61\ns_sub_u32 s35, s35, 1\ns_cbranch_scc0 {L}')
    def lflag(off): a(f's_mov_b64 exec, 1\nds_write_b32 v24, v25 offset:{off-FL}\ns_mov_b64 exec, -1')
    ga = NF//4
    g0 = g0 or max(1, ga - kf)
    for g in range(g0):
        group((8, 9, 10, 11), 40, waits=(0, 0, 0, 0)); a('s_add_u32 s33, s33, s32\ns_add_u32 m0, m0, s61')
    a('s_waitcnt lgkmcnt(0)')
    if not b0late: a('s_barrier')
    a(f'''; descriptors for V s[44:47], wo s[48:51], w_down s[52:55]; tag base; x values and offsets of the final step
s_add_u32 s44, s12, s34
s_addc_u32 s45, s13, 0
s_mov_b32 s46, 0x10000
s_mov_b32 s47, 0x20000
s_load_dword s60, s[30:31], {EPOCH}
s_and_b32 s3, s6, 1
s_lshl_b32 s3, s3, 3
s_add_u32 s3, s3, s5
s_lshl_b32 s3, s3, 4
s_lshr_b32 s7, s6, 1
s_add_u32 s3, s3, s7
s_lshl_b32 s3, s3, 3
s_load_dwordx2 s[62:63], s[8:9], s3
s_mov_b32 s68, {BUD}
s_mov_b32 s10, 0x0c0c0400
s_mov_b32 s11, 0x04000c0c
v_add_u32 v16, v6, v7
v_xor_b32 v17, 0x80, v16
v_and_b32 v7, 1, v1
v_lshlrev_b32 v6, 2, v7
v_add_u32 v26, s3, v6
s_lshl_b32 s3, s5, 15
s_lshl_b32 s7, s6, 4
s_add_u32 s3, s3, s7
s_add_u32 s3, s3, {ES}
v_and_b32 v6, 31, v0
v_lshlrev_b32 v6, 9, v6
v_add_u32 v27, s3, v6
v_lshrrev_b32 v2, 3, v0
v_and_b32 v4, 7, v0
v_lshlrev_b32 v3, 1, v7
v_xor_b32 v3, v3, v4
v_lshlrev_b32 v3, 4, v3
v_lshl_add_u32 v20, v2, 10, v3
v_xor_b32 v21, 64, v20
v_add_u32 v21, 7168, v21
v_add_u32 v22, 14336, v20
v_add_u32 v23, 14336, v21
v_mov_b32 v24, {FL}
v_mov_b32 v25, 1
s_lshr_b32 s3, s6, 3
s_lshl_b32 s7, s5, 2
s_add_u32 s3, s3, s7
s_lshl_b32 s3, s3, 17
s_and_b32 s7, s6, 7
s_lshl_b32 s7, s7, 7
s_add_u32 s3, s3, s7
s_add_u32 s48, s16, s3
s_addc_u32 s49, s17, 0
s_mov_b32 s50, {127*1024+128}
s_mov_b32 s51, 0x20000
s_sub_u32 s3, s6, 4
s_cselect_b32 s3, 0, s3
s_cselect_b32 s54, 0, {63*1024+128}
s_lshl_b32 s3, s3, 16
s_lshl_b32 s7, s5, 7
s_add_u32 s3, s3, s7
s_add_u32 s52, s24, s3
s_addc_u32 s53, s25, 0
s_mov_b32 s55, 0x20000''')
    if b0late: a('s_barrier')
    W1v = (8, 9, 10, 11); Kv = (12, 13, 14, 15); Vv = (16, 16, 17, 17); W2v = (20, 21, 22, 23)
    loop(ga-g0, W1v, 40, 's32')
    a(f's_waitcnt vmcnt({4*ga})'); lflag(F_LD+12); T(5)
    loop(8-ga, W1v, 40, 's32')
    a(f's_mov_b32 s33, 0\ns_mov_b32 m0, {LWD}')
    loop(2, W2v, 52, '0x8000')
    a(f's_mov_b32 s33, s57\ns_mov_b32 m0, {LK+4096*kf}')
    loop(ga-2, Kv, 36, 's61', True)
    a(f's_waitcnt vmcnt({4*ga})'); lflag(F_LD); T(3)
    if wide:
        n, wn, allw = wide
        if not allw:
            a('s_cmp_lt_u32 s6, 16\ns_cbranch_scc0 L_wide')
            loop(n, Kv, 36, 's61', True)
            a('s_branch L_wide_e\nL_wide:')
        sv = Wc[0]; Wc[0] = wn-1
        loop(n, Kv, 36, 's61', True)
        Wc[0] = sv
        a('L_wide_e:')
        loop(16-kf-ga+2-n, Kv, 36, 's61', True)
    else: loop(16-kf-ga+2, Kv, 36, 's61', True)
    loop(ga, Vv, 44, 's61', True)
    a(f's_waitcnt vmcnt({4*ga})'); lflag(F_LD+4); T(6)
    loop(8-ga, Vv, 44, 's61', True)
    a('; the second half of V overwrites the phase-1 weights: wait until all four waves have read them')
    spin(24, F_W1F-FL, 28)
    if wt < 4:
        a(f's_mov_b32 s57, s33\ns_mov_b32 s33, 0\ns_mov_b32 m0, {LWO}')
        loop(4-wt, W2v, 48, '0x8000')
        a(f's_mov_b32 s33, s57\ns_mov_b32 m0, {LV+32768}')
    loop(gE-8, Vv, 44, 's61', True)
    Wc[0] = NFE-1
    loop(16-gE, Vv, 44, 's61', True)
    nW2 = 4*wt
    need = 64 - 8*vs
    done = [not vsplit]
    def vflag(cnt, last=False):
        if not done[0] and (cnt + need >= NFE or last):
            a(f's_waitcnt vmcnt({cnt+need})'); lflag(F_LD+8); done[0] = True
    vflag(0, wt == 0)
    a(f's_mov_b32 s33, {0x8000*(4-wt)}\ns_mov_b32 m0, {LWO+4096*(4-wt)}')
    cnt = 0
    for g in range(wt):
        group(W2v, 48, waits=[1 if cnt+k < NFE else 0 for k in range(4)]); cnt += 4
        vflag(cnt, g == wt-1)
        if g < wt-1: a('s_add_u32 s33, s33, 0x8000\ns_add_u32 m0, m0, s61')
    T(7)
    a(f's_waitcnt vmcnt({nW2})')
    T(2)
    a('s_barrier                          ; B1: V landed')
    T(8)
    G = 32
    a(f'''s_add_u32 s60, s60, {TAGINC}
s_mov_b32 s64, s30
s_mov_b32 s65, s31
s_mov_b32 s66, {WSZ}
s_mov_b32 s67, 0x20000
s_mov_b32 s34, 0x4000
s_mov_b32 s56, s26
s_mov_b32 s57, s27
s_movk_i32 s58, 0x800
s_mov_b32 s59, 0x20000
s_mov_b32 s24, s10
s_mov_b32 s25, s11
v_and_b32 v5, 1, v1
v_cmp_eq_u32 vcc, 1, v5
v_mov_b32 v2, s62
v_mov_b32 v3, s63
v_cndmask_b32 v2, v2, v3, vcc
v_lshlrev_b32 v28, 16, v2
v_and_b32 v29, 0xffff0000, v2
s_setprio 3
s_waitcnt vmcnt(0)''')
    T(10)
    if b2a: a('s_barrier')
    a('s_barrier')
    T(11)
    def red32(r):
        for k in range(4): a(f'v_and_b32 v{r+k}, 0xffffff00, v{r+k}')
        a(f'''v_permlane16_swap_b32 v{r}, v{r+2}
v_permlane16_swap_b32 v{r+1}, v{r+3}
v_pk_add_f32 {vr(r,2)}, {vr(r,2)}, {vr(r+2,2)}''')
        for k in (8, 4, 2, 1):
            for e in range(2): a(f'v_add_f32_dpp v{r+e}, v{r+e}, v{r+e} row_ror:{k} row_mask:0xf bank_mask:0xf')
        a(f'v_cvt_pk_bf16_f32 v{r+1}, v{r}, v{r+1}\nv_lshlrev_b32 v{r}, 16, v{r+1}\nv_and_b32 v{r+1}, 0xffff0000, v{r+1}')
    a('; final step: lane p < 32 reads producer p.  f partials (same group) first; the s partials come from\n; all groups and are first read once this workgroup\'s own write-through stores have landed (B3): a\n; read that comes earlier caches the old line and makes the hand-off slower')
    PAD()
    a(f's_mov_b32 exec_hi, 0\nbuffer_load_dwordx4 {vr(G+4,4)}, v27, s[64:67], s34 offen sc1')
    if b3: a('s_barrier')
    if fsleep: a(f's_sleep {fsleep}')
    a(f'buffer_load_dwordx4 {vr(G,4)}, v27, s[64:67], 0 offen sc1')
    ppoll([(G+4, 27, 's34', 0, 'P')], 64, 'pf', issued=True, first=1, tp=G+8, lo=True)
    red32(G+4)
    a(f'''v_mul_f32 v{G+6}, 0xbfb8aa3b, v{G+4}
v_mul_f32 v{G+7}, 0xbfb8aa3b, v{G+5}
v_exp_f32 v{G+6}, v{G+6}
v_exp_f32 v{G+7}, v{G+7}
v_add_f32 v{G+6}, 1.0, v{G+6}
v_add_f32 v{G+7}, 1.0, v{G+7}
v_rcp_f32 v{G+6}, v{G+6}
v_rcp_f32 v{G+7}, v{G+7}
v_pk_mul_f32 {vr(G+4,2)}, {vr(G+4,2)}, {vr(G+6,2)}
v_cvt_pk_bf16_f32 v{G+5}, v{G+4}, v{G+5}
v_lshlrev_b32 v{G+4}, 16, v{G+5}
v_and_b32 v{G+5}, 0xffff0000, v{G+5}''')
    PAD()
    RB()
    ppoll([(G, 27, '0', 0, 'P')], 64, 'ps', issued=True, tp=G+8, lo=True)
    red32(G)
    a(f'''v_pk_mul_f32 {vr(G,2)}, {vr(G,2)}, {vr(G+4,2)}
v_cvt_pk_bf16_f32 v{G+1}, v{G}, v{G+1}
v_lshlrev_b32 v{G}, 16, v{G+1}
v_and_b32 v{G+1}, 0xffff0000, v{G+1}
v_pk_add_f32 {vr(G,2)}, {vr(G,2)}, v[28:29]
s_mov_b32 exec_lo, 0x10001
v_cvt_pk_bf16_f32 v{G}, v{G}, v{G+1}
buffer_store_dword v{G}, v26, s[56:59], 0 offen''')
    PAD()
    a(f'''; every wave of every workgroup read word 0 before the results summed above were produced
s_cmp_lg_u32 s2, 0
s_cbranch_scc1 L_lend
s_mov_b64 exec, 1
v_mov_b32 v1, {EPOCH}
v_mov_b32 v2, s60
buffer_store_dword v2, v1, s[64:67], 0 offen
L_lend:''')
    if diag:
        T(13); C(15)
        for i in ((9, 12) if keep and 'pub1' in keep else (4, 9, 12)): T(i)
        if diag != 'amp': a(f's_mov_b32 s{TSB+28}, 0')
        a('s_branch L_fin')
    else: a('s_endpgm')
    v = V(8)
    vFL = v('FL'); vFLW = v('FLW'); vONE = v('ONE')
    tmp = v('tmp', 8, 4); X = v('X', 8, 4)
    def setflag(off): a(f's_mov_b64 exec, 1\nds_write_b32 v{vFLW}, v{vONE} offset:{off-FL}\ns_mov_b64 exec, -1')
    a(f'''; =========================== compute waves (w = 0..3) ===========================
L_comp:
s_barrier
s_setprio {cprio}
s_sub_u32 s4, s4, 1               ; w
s_mov_b32 s46, {WSZ}
s_mov_b32 s47, 0x20000
s_waitcnt lgkmcnt(0)
s_load_dword s60, s[30:31], {EPOCH}
s_mov_b32 s44, s30
s_mov_b32 s45, s31
s_mov_b32 s68, {BUD}
s_getreg_b32 s63, hwreg(HW_REG_XCC_ID)
s_mov_b32 s24, 0x0c0c0400
s_mov_b32 s25, 0x04000c0c
s_mov_b32 s20, 0x07060500
s_mov_b32 s21, 0x07060501
s_mov_b32 s22, 0x07060502
s_mov_b32 s23, 0x07060503
s_cmp_lt_u32 s6, 16
s_cbranch_scc0 L_ffnunit
s_lshr_b32 s57, s6, 2
s_lshl_b32 s59, s5, 5
s_add_u32 s59, s59, s6
s_lshl_b32 s59, s59, 9
s_add_u32 s59, s59, {EQ}
s_movk_i32 s61, 0x2000
s_mov_b32 s58, -1
s_branch L_unitdone
L_ffnunit:
s_lshl_b32 s3, s5, 4
s_add_u32 s3, s3, s6
s_sub_u32 s3, s3, 16
s_bfe_u32 s57, s3, 0x20001
s_and_b32 s59, s3, 1
s_lshl_b32 s59, s59, 2
s_add_u32 s59, s59, s57
s_andn2_b32 s7, s3, 7
s_add_u32 s59, s59, s7
s_lshl_b32 s59, s59, 10
s_add_u32 s59, s59, {EF}
s_movk_i32 s61, 512
s_mov_b32 s58, s3
s_cmp_lt_u32 s3, 112
s_cbranch_scc1 L_unitdone
s_mov_b32 s57, 0
s_mov_b32 s59, {DUMMY}
s_mov_b32 s58, -1
L_unitdone:''')
    T(1)
    vTR = v('TR'); vTV = v('TV', 2); vKA = v('KA', 4); vAX = v('AX'); vAO = v('AO'); vAH = v('AH')
    vQB = v('QB'); vPB = v('PB'); vP1 = v('P1'); vGQ = v('GQ'); vGH = v('GH'); vPO = v('PO'); vGO = v('GO')
    vPS = v('PS'); vQW = v('QW'); vPW = v('PW'); vMX = v('MXa'); vHW = v('HW'); vOW = v('OW'); vGR = v('GR'); vPH = v('PH')
    a(f'''v_mov_b32 v{vFL}, {FL}
v_lshrrev_b32 v{tmp+6}, 5, v0
v_and_b32 v5, 31, v0
v_lshlrev_b32 v2, 10, v{tmp+6}
v_lshl_add_u32 v2, v5, 5, v2
v_add_u32 v2, {LP}, v2
s_lshl_b32 s3, s57, 8
v_lshlrev_b32 v1, 10, v{tmp+6}
v_lshl_add_u32 v1, v5, 3, v1
v_add_u32 v1, s3, v1
v_add_u32 v1, {LP}, v1            ; raw x: this unit's rows, 4 values per lane
v_mul_u32_u24 v3, {XS}, v{tmp+6}
v_lshl_add_u32 v3, v5, 3, v3
v_add_u32 v3, {XN}, v3            ; normalised rows''')
    F = v('F', 16, 4); D = v('Dd', 16, 4)
    spin(vFL, F_LD+12-FL, tmp, 1)
    a(f'''s_add_u32 s60, s60, {TAGINC}
s_and_b32 s63, s63, 15
s_cmp_lg_u32 s4, 0
s_cbranch_scc1 L_nox
s_lshl_b32 s3, s5, 5
s_add_u32 s3, s3, s6
s_lshl_b32 s3, s3, 3
s_add_u32 s3, s3, {EX}
v_mov_b32 v4, s3
v_mov_b32 v6, s63
v_mov_b32 v7, s60
s_mov_b64 exec, 1
buffer_store_dwordx2 v[6:7], v4, s[44:47], 0 offen sc0
s_mov_b64 exec, -1
L_nox:''')
    a(f'ds_read_b128 {vr(X,4)}, v2\nds_read_b128 {vr(X+4,4)}, v2 offset:16\nds_read_b64 {vr(tmp+4,2)}, v1\ns_waitcnt lgkmcnt(1)')
    T(2)
    for i in range(8):
        a(f'v_lshlrev_b32 v{F+2*i}, 16, v{X+i}\nv_and_b32 v{F+2*i+1}, 0xffff0000, v{X+i}')
    def red32l(r, t):
        a(f'v_mov_b32 v{t}, v{r}\nv_permlane16_swap_b32 v{r}, v{t}\nv_add_f32 v{r}, v{r}, v{t}')
        for k in (8, 4, 2, 1): a(f'v_add_f32_dpp v{r}, v{r}, v{r} row_ror:{k} row_mask:0xf bank_mask:0xf')
    for i in range(4): a(f'v_pk_add_f32 {vr(D+2*i,2)}, {vr(F+4*i,2)}, {vr(F+4*i+2,2)}')
    a(f'''v_pk_add_f32 {vr(D,2)}, {vr(D,2)}, {vr(D+2,2)}
v_pk_add_f32 {vr(D+4,2)}, {vr(D+4,2)}, {vr(D+6,2)}
v_pk_add_f32 {vr(D,2)}, {vr(D,2)}, {vr(D+4,2)}
v_add_f32 v{tmp}, v{D}, v{D+1}''')
    red32l(tmp, tmp+1)
    a(f'v_mul_f32 v{tmp}, 0xbb000000, v{tmp}          ; -mean')
    for i in range(8): a(f'v_pk_add_f32 {vr(F+2*i,2)}, {vr(F+2*i,2)}, {vr(tmp,2)} op_sel_hi:[1,0]')
    a(f'v_pk_mul_f32 {vr(D,2)}, {vr(F,2)}, {vr(F,2)}\nv_pk_mul_f32 {vr(D+2,2)}, {vr(F+2,2)}, {vr(F+2,2)}')
    for i in range(2, 8): a(f'v_pk_fma_f32 {vr(D+2*(i&1),2)}, {vr(F+2*i,2)}, {vr(F+2*i,2)}, {vr(D+2*(i&1),2)}')
    a(f'''v_pk_add_f32 {vr(D,2)}, {vr(D,2)}, {vr(D+2,2)}
v_cvt_pk_bf16_f32 v{tmp}, v{tmp}, v{tmp}
v_add_f32 v{tmp+2}, v{D}, v{D+1}
v_lshlrev_b32 v{tmp}, 16, v{tmp}          ; -bf16(mean)''')
    red32l(tmp+2, tmp+3)
    a(f'''v_mul_f32 v{tmp+2}, 0x3b000000, v{tmp+2}
s_waitcnt lgkmcnt(0)
v_cvt_pk_bf16_f32 v{tmp+2}, v{tmp+2}, v{tmp+2}
v_lshlrev_b32 v{F}, 16, v{tmp+4}
v_lshlrev_b32 v{tmp+2}, 16, v{tmp+2}
v_and_b32 v{F+1}, 0xffff0000, v{tmp+4}
v_add_f32 v{tmp+2}, 0x3727c5ac, v{tmp+2}
v_lshlrev_b32 v{F+2}, 16, v{tmp+5}
v_cvt_pk_bf16_f32 v{tmp+2}, v{tmp+2}, v{tmp+2}
v_and_b32 v{F+3}, 0xffff0000, v{tmp+5}
v_lshlrev_b32 v{tmp+2}, 16, v{tmp+2}
v_sqrt_f32 v{tmp+2}, v{tmp+2}
v_pk_add_f32 {vr(F,2)}, {vr(F,2)}, {vr(tmp,2)} op_sel_hi:[1,0]
v_pk_add_f32 {vr(F+2,2)}, {vr(F+2,2)}, {vr(tmp,2)} op_sel_hi:[1,0]
v_cvt_pk_bf16_f32 v{tmp+2}, v{tmp+2}, v{tmp+2}
v_cvt_pk_bf16_f32 v{tmp+4}, v{F}, v{F+1}
v_lshlrev_b32 v{tmp+2}, 16, v{tmp+2}
v_cvt_pk_bf16_f32 v{tmp+5}, v{F+2}, v{F+3}
v_rcp_f32 v{tmp+2}, v{tmp+2}
v_lshlrev_b32 v{F}, 16, v{tmp+4}
v_and_b32 v{F+1}, 0xffff0000, v{tmp+4}
v_lshlrev_b32 v{F+2}, 16, v{tmp+5}
v_and_b32 v{F+3}, 0xffff0000, v{tmp+5}
v_pk_mul_f32 {vr(F,2)}, {vr(F,2)}, {vr(tmp+2,2)} op_sel_hi:[1,0]
v_pk_mul_f32 {vr(F+2,2)}, {vr(F+2,2)}, {vr(tmp+2,2)} op_sel_hi:[1,0]
v_cvt_pk_bf16_f32 v{tmp+4}, v{F}, v{F+1}
v_cvt_pk_bf16_f32 v{tmp+5}, v{F+2}, v{F+3}
ds_write_b64 v3, {vr(tmp+4,2)}''')
    BA = v('BA', 64, 4); BB = v('BB', 64, 4); ACC = v('ACC', 8, 4)
    G = F
    a(f'''s_lshl_b32 s3, s4, 2
s_add_u32 s3, s3, {FL}
v_mov_b32 v{vFLW}, s3
v_mov_b32 v{vONE}, 1
v_lshrrev_b32 v1, 2, v0           ; l>>2
v_and_b32 v2, 3, v0               ; l&3
v_lshrrev_b32 v3, 4, v0           ; kg
v_and_b32 v7, 3, v1
v_lshl_add_u32 v7, v3, 3, v7
s_lshl_b32 s3, s4, 1
v_and_b32 v5, 7, v1
v_xor_b32 v5, s3, v5
v_lshlrev_b32 v6, 8, v7
v_lshl_add_u32 v6, v2, 3, v6
v_add_u32 v6, {LV}, v6
v_lshl_add_u32 v{vTV}, v5, 5, v6
v_xor_b32 v{vTV+1}, 32, v{vTV}
v_lshlrev_b32 v6, 4, v3           ; kg*16
v_and_b32 v4, 1, v0               ; l&1
v_mul_u32_u24 v5, {XS}, v4
v_add_u32 v5, v5, v6
v_add_u32 v{vAX}, {XN}, v5
s_lshl_b32 s3, s4, 7
s_add_u32 s3, s3, s59
v_mul_u32_u24 v5, s61, v4
v_add3_u32 v5, s3, v5, v6
v_bfe_u32 v4, v0, 1, 1
v_lshl_add_u32 v{vP1}, v4, 6, v5
v_cmp_eq_u32 s[64:65], 1, v4''')
    for ks in range(4): a(f'ds_read_b128 {vr(BB+4*ks,4)}, v{vAX} offset:{64*ks}')
    for i in range(8): a(f'v_mov_b32 v{ACC+i}, 0')
    a(f'v_mov_b32 v{tmp+7}, s60')
    spin(vFL, F_LD-FL, tmp, 1)
    T(3)
    for ks in range(4):
        for u in range(2):
            r = BA+8*ks+4*u
            a(f'ds_read_b64_tr_b16 {vr(r,2)}, v{vTV+u} offset:{LW1-LV+8192*ks}\nds_read_b64_tr_b16 {vr(r+2,2)}, v{vTV+u} offset:{LW1-LV+8192*ks+1024}')
    for i in range(8):
        ks, u = i >> 1, i & 1
        a(f's_waitcnt lgkmcnt({14-2*i})')
        a(f'v_mfma_f32_16x16x32_bf16 {vr(ACC+4*u,4)}, {vr(BA+4*i,4)}, {vr(BB+4*ks,4)}, {vr(ACC+4*u,4)}')
    setflag(F_W1F)
    for i in range(4): a(f'v_cndmask_b32 v{ACC+i}, v{ACC+i}, v{ACC+4+i}, s[64:65]')
    for i in range(4): a(f'v_add_u32 v{ACC+i}, 0x80, v{ACC+i}')
    for i in range(4): a(f'v_perm_b32 v{ACC+i}, v{ACC+i}, v{tmp+7}, s{20+i}')
    a(f's_mov_b32 exec_lo, 0x000f000f\ns_mov_b32 exec_hi, 0x000f000f\nbuffer_store_dwordx4 {vr(ACC,4)}, v{vP1}, s[44:47], 0 offen sc0')
    vGX = v('GX'); XG = v('XG', 2, 2)
    xld = f'buffer_load_dwordx2 {vr(XG,2)}, v{vGX}, s[44:47], 0 offen sc1'
    a(f'''s_mov_b64 exec, -1
s_lshl_b32 s3, s5, 8
s_add_u32 s3, s3, {EX}
v_and_b32 v4, 31, v0
v_lshlrev_b32 v4, 3, v4
v_add_u32 v{vGX}, s3, v4
{xld}''')
    T(4)
    a(f'''v_lshrrev_b32 v1, 2, v0           ; l>>2
v_and_b32 v2, 3, v0               ; l&3
v_lshrrev_b32 v3, 4, v0           ; kg
v_and_b32 v4, 15, v0              ; n
v_bfe_u32 v5, v0, 3, 2
v_xor_b32 v5, s4, v5
v_lshlrev_b32 v5, 5, v5
v_and_b32 v7, 3, v1
v_lshl_add_u32 v7, v3, 3, v7
v_lshl_add_u32 v5, v7, 7, v5
v_lshl_add_u32 v5, v2, 3, v5
v_add_u32 v{vTR}, {LWO}, v5
s_lshl_b32 s3, s4, 14
v_lshlrev_b32 v6, 8, v4
v_add_u32 v6, s3, v6
v_xor_b32 v5, v3, v4
v_lshl_add_u32 v{vKA}, v5, 4, v6
v_xor_b32 v{vKA+1}, 64, v{vKA}
v_xor_b32 v{vKA+2}, 0x80, v{vKA}
v_xor_b32 v{vKA+3}, 0xc0, v{vKA}
v_lshlrev_b32 v6, 4, v3           ; kg*16
v_and_b32 v{tmp+3}, 1, v0         ; l&1
v_and_b32 v5, 1, v1               ; (l>>2)&1
v_mul_u32_u24 v7, {OS}, v{tmp+3}
v_add_u32 v7, v7, v6
v_add_u32 v{vAO}, {LO}, v7
v_lshl_add_u32 v7, v{tmp+3}, 7, v6
v_add_u32 v{vAH}, {LH}, v7
v_mul_u32_u24 v7, {QS}, v2
v_add_u32 v7, v7, v6
v_add_u32 v{vQB}, {LQ}, v7
v_mul_u32_u24 v7, {PS_}, v2
v_add_u32 v7, v7, v6
v_add_u32 v{vPB}, {LP}, v7
v_and_b32 v{tmp+1}, 1, v3         ; kg&1
s_lshr_b32 s3, s58, 3
s_lshl_b32 s3, s3, 13
s_and_b32 s7, s58, 7
s_lshl_b32 s7, s7, 6
s_add_u32 s3, s3, s7
s_add_u32 s3, s3, {EF}
v_lshlrev_b32 v7, 9, v1
v_lshl_add_u32 v7, v2, 4, v7
v_add_u32 v{vGR}, s3, v7
s_lshl_b32 s3, s58, 7
s_add_u32 s3, s3, {EH}
v_lshlrev_b32 v7, 6, v5
v_lshl_add_u32 v7, v2, 4, v7
v_lshl_add_u32 v7, v{tmp+1}, 3, v7
v_add_u32 v{vPH}, s3, v7
s_sub_u32 s7, s6, 4
s_cselect_b32 s7, 0, s7
s_lshl_b32 s3, s7, 9
s_add_u32 s3, s3, {EH}
v_lshlrev_b32 v7, 3, v0
v_add_u32 v{vGH}, s3, v7
v_bfe_u32 v7, v0, 3, 1
v_lshlrev_b32 v7, 7, v7
v_lshl_add_u32 v7, v3, 5, v7
v_and_b32 v{tmp+5}, 7, v0
v_lshl_add_u32 v7, v{tmp+5}, 2, v7
v_add_u32 v{vHW}, {LH}, v7
s_lshr_b32 s7, s6, 4
s_lshl_b32 s3, s5, 1
s_add_u32 s3, s3, s7
s_lshl_b32 s3, s3, 4
s_add_u32 s3, s3, s4
s_lshl_b32 s3, s3, 9
s_add_u32 s3, s3, {EQ}
v_lshrrev_b32 v{tmp+2}, 5, v0     ; l>>5
v_and_b32 v5, 31, v0
v_lshlrev_b32 v7, 11, v{tmp+2}
v_lshl_add_u32 v7, v5, 4, v7
v_add_u32 v{vGQ}, s3, v7
s_mul_i32 s3, s4, {QS}
s_add_u32 s3, s3, {LQ}
v_lshlrev_b32 v7, 2, v{tmp+2}
v_lshl_add_u32 v7, v5, 3, v7
v_add_u32 v{vQW}, s3, v7
v_bfe_u32 v6, v0, 3, 1
v_and_b32 v7, 7, v0
s_lshr_b32 s3, s6, 3
s_lshl_b32 s7, s5, 2
s_add_u32 s66, s3, s7             ; hq
s_lshl_b32 s3, s66, 14
s_lshl_b32 s7, s4, 7
s_add_u32 s3, s3, s7
s_add_u32 s3, s3, {EO}
v_lshlrev_b32 v5, 13, v6
v_lshl_add_u32 v5, v3, 11, v5
v_lshl_add_u32 v5, v7, 4, v5
v_add_u32 v{vGO}, s3, v5
s_lshl_b32 s3, s4, 6
s_add_u32 s3, s3, {LO}
v_mul_u32_u24 v5, {OS}, v6
v_lshl_add_u32 v5, v7, 3, v5
v_lshl_add_u32 v5, v{tmp+1}, 2, v5
v_lshl_add_u32 v5, v{tmp+2}, 1, v5
v_add_u32 v{vOW}, s3, v5
; o publish
s_lshl_b32 s3, s5, 16
s_lshl_b32 s7, s6, 9
s_add_u32 s3, s3, s7
s_lshl_b32 s7, s4, 7
s_add_u32 s3, s3, s7
s_add_u32 s3, s3, {EO}
v_lshlrev_b32 v5, 14, v2
v_and_b32 v6, 1, v1
v_lshl_add_u32 v5, v6, 6, v5
v_lshl_add_u32 v5, v3, 4, v5
v_add_u32 v{vPO}, s3, v5
s_lshl_b32 s3, s4, 7
s_add_u32 s3, s3, {LP}
v_mul_u32_u24 v5, {PS_}, v2
v_and_b32 v6, 3, v1
v_lshl_add_u32 v5, v6, 5, v5
v_lshl_add_u32 v5, v3, 3, v5
v_add_u32 v{vPW}, s3, v5
v_lshlrev_b32 v5, 2, v2
v_add_u32 v{vMX}, {MX}, v5
s_and_b32 s3, s6, 7
s_lshl_b32 s3, s3, 6
s_add_u32 s3, s3, s66
s_lshl_b32 s66, s3, 9             ; s slot
s_add_u32 s7, s6, 28
s_and_b32 s7, s7, 31
s_lshl_b32 s67, s5, 6
s_add_u32 s7, s7, s67
s_add_u32 s7, s7, 32
s_lshl_b32 s67, s7, 9             ; f slot
s_lshl_b32 s3, s4, 7
s_add_u32 s3, s3, {ES}
v_lshlrev_b32 v5, 5, v3
v_lshl_add_u32 v5, v{tmp+3}, 4, v5
v_add_u32 v{vPS}, s3, v5''')
    if pw:
        a('; bring the lines this wave will publish into L2 now, so that their first readers do not wait for memory')
        if 'o' in pw: a(f's_mov_b64 exec, 15\nbuffer_load_dword v1, v{vPO}, s[44:47], 0 offen')
        if 'f' in pw: a(f's_mov_b64 exec, 1\nbuffer_load_dword v2, v{vPS}, s[44:47], s67 offen')
        if 's' in pw: a(f's_mov_b64 exec, 1\nbuffer_load_dword v3, v{vPS}, s[44:47], s66 offen')
        a('s_mov_b64 exec, -1')
    for i in range(64): a(f'v_mov_b32 v{BB+i}, 0')
    RB()
    a('s_movk_i32 s34, 0x1000')
    HG = v('HG', 4, 4)
    a(f's_cmp_lg_u32 s4, 0\ns_cselect_b32 s58, -1, s58\ns_cmp_lt_i32 s58, 0\ns_cbranch_scc1 L_nored0\nbuffer_load_dwordx4 {vr(HG,4)}, v{vGR}, s[44:47], 0 offen sc1\nL_nored0:')
    qit = [(G, vGQ, '0', 0, 'P'), (G+4, vGQ, 's34', 0, 'P')]
    for it in qit: a(f'buffer_load_dwordx4 {vr(it[0],4)}, v{it[1]}, s[44:47], {it[2]} offen sc1')
    a(f'''s_mov_b32 s7, {xtries}
s_waitcnt vmcnt(2)
L_px:
v_cmp_ne_u32 vcc, s60, v{XG+1}
s_cbranch_vccz L_px_d
{xld}
s_sub_u32 s7, s7, 1
s_waitcnt vmcnt(0)
s_cbranch_scc0 L_px
s_mov_b32 s63, -1
L_px_d:
v_cmp_ne_u32 vcc, s63, v{XG}
s_cmp_eq_u64 vcc, 0
s_cselect_b32 s62, {1 if forceglobal else 0}, 1
s_cmp_eq_u32 s62, 0
s_cbranch_scc1 L_p1done
s_mov_b32 exec_lo, 0x000f000f
s_mov_b32 exec_hi, 0x000f000f
buffer_store_dwordx4 {vr(ACC,4)}, v{vP1}, s[44:47], 0 offen sc1
s_mov_b64 exec, -1
L_p1done:''')
    ppoll(qit, 44, 'pq', issued=True, tp=tmp)
    T(5)
    if diag and keep and '#q' in keep: C(14)
    for i in range(8): a(f'v_and_b32 v{G+i}, 0xffffff00, v{G+i}')
    a(f'''v_pk_add_f32 {vr(G,2)}, {vr(G,2)}, {vr(G+4,2)}
v_pk_add_f32 {vr(G+2,2)}, {vr(G+2,2)}, {vr(G+6,2)}
v_permlane32_swap_b32 v{G}, v{G+2}
v_permlane32_swap_b32 v{G+1}, v{G+3}
v_pk_add_f32 {vr(G,2)}, {vr(G,2)}, {vr(G+2,2)}
v_cvt_pk_bf16_f32 v{G}, v{G}, v{G+1}
ds_write_b32 v{vQW}, v{G}
s_waitcnt lgkmcnt(0)''')
    setflag(F_S2)
    a('; ---- h = silu(gate) * up for 16 columns, published for all groups')
    a('s_cmp_lt_i32 s58, 0\ns_cbranch_scc1 L_nored')
    ppoll([(HG, vGR, '0', 0, 'P')], 44, 'pr', issued=True, tp=tmp)
    for i in range(4): a(f'v_and_b32 v{HG+i}, 0xffffff00, v{HG+i}')
    for i in range(4): a(f'v_add_f32_dpp v{HG+i}, v{HG+i}, v{HG+i} row_ror:8 row_mask:0xf bank_mask:0xf')
    a(f'''v_permlane16_swap_b32 v{HG}, v{HG+2}
v_permlane16_swap_b32 v{HG+1}, v{HG+3}
v_pk_add_f32 {vr(HG,2)}, {vr(HG,2)}, {vr(HG+2,2)}
v_cvt_pk_bf16_f32 v{HG}, v{HG}, v{HG+1}
v_mov_b32 v{HG+1}, v{HG}
v_permlane32_swap_b32 v{HG}, v{HG+1}
v_lshlrev_b32 v{tmp}, 16, v{HG}
v_and_b32 v{tmp+1}, 0xffff0000, v{HG}
v_mul_f32 v{tmp+2}, 0xbfb8aa3b, v{tmp}
v_mul_f32 v{tmp+3}, 0xbfb8aa3b, v{tmp+1}
v_exp_f32 v{tmp+2}, v{tmp+2}
v_exp_f32 v{tmp+3}, v{tmp+3}
v_lshlrev_b32 v{HG+2}, 16, v{HG+1}
v_add_f32 v{tmp+2}, 1.0, v{tmp+2}
v_add_f32 v{tmp+3}, 1.0, v{tmp+3}
v_rcp_f32 v{tmp+2}, v{tmp+2}
v_rcp_f32 v{tmp+3}, v{tmp+3}
v_and_b32 v{HG+3}, 0xffff0000, v{HG+1}
v_mul_f32 v{tmp}, v{tmp}, v{tmp+2}
v_mul_f32 v{tmp+1}, v{tmp+1}, v{tmp+3}
v_cvt_pk_bf16_f32 v{tmp}, v{tmp}, v{tmp+1}
v_and_b32 v{tmp+1}, 0xffff0000, v{tmp}
v_lshlrev_b32 v{tmp}, 16, v{tmp}
v_mul_f32 v{tmp}, v{tmp}, v{HG+2}
v_mul_f32 v{tmp+1}, v{tmp+1}, v{HG+3}
v_cvt_pk_bf16_f32 v{tmp}, v{tmp}, v{tmp+1}
v_mov_b32 v{tmp+1}, s60
s_mov_b32 exec_lo, 0x00ff00ff
s_mov_b32 exec_hi, 0
buffer_store_dwordx2 {vr(tmp,2)}, v{vPH}, s[44:47], 0 offen sc1
s_mov_b64 exec, -1
L_nored:''')
    spin(vFL, F_S2-FL, tmp)
    for t in range(4):
        a(f's_mov_b32 exec_lo, {0x000f000f << (4*t)}\ns_mov_b32 exec_hi, {0x000f000f << (4*t)}')
        for ks in range(4): a(f'ds_read_b128 {vr(BB+16*t+4*ks,4)}, v{vQB} offset:{64*ks}')
    a('s_mov_b64 exec, -1')
    for i in range(4): a(f'v_mov_b32 v{ACC+i}, 0')
    spin(vFL, F_LD+4-FL, tmp, 1)
    T(6)
    for t in range(4):
        for ks in range(4): a(f'ds_read_b128 {vr(BA+16*t+4*ks,4)}, v{vKA+ks} offset:{4096*t}')
    for i in range(16):
        a(f's_waitcnt lgkmcnt({15-i})')
        a(f'v_mfma_f32_16x16x32_bf16 {vr(ACC,4)}, {vr(BA+4*i,4)}, {vr(BB+4*i,4)}, {vr(ACC,4)}')
    S = v('S', 4, 4); M = v('M'); L_ = v('L')
    def rne4(src, dst, t):
        a(f'''v_cvt_pk_bf16_f32 v{t}, v{src}, v{src+1}
v_cvt_pk_bf16_f32 v{t+1}, v{src+2}, v{src+3}
v_lshlrev_b32 v{dst}, 16, v{t}
v_and_b32 v{dst+1}, 0xffff0000, v{t}
v_lshlrev_b32 v{dst+2}, 16, v{t+1}
v_and_b32 v{dst+3}, 0xffff0000, v{t+1}''')
    hld = f'buffer_load_dwordx2 {vr(HG,2)}, v{vGH}, s[44:47], 0 offen sc1'
    for i in range(16, 24): a(f'v_mov_b32 v{BB+i}, 0')
    rne4(ACC, S, tmp)
    for i in range(4): a(f'v_mul_f32 v{S+i}, 0x3db504f3, v{S+i}')
    rne4(S, S, tmp)
    def xl(op, r, t):
        a(f'''{op}_dpp v{r}, v{r}, v{r} row_ror:4 row_mask:0xf bank_mask:0xf
{op}_dpp v{r}, v{r}, v{r} row_ror:8 row_mask:0xf bank_mask:0xf
v_mov_b32 v{t}, v{r}
v_permlane16_swap_b32 v{r}, v{t}
{op} v{r}, v{r}, v{t}
v_mov_b32 v{t}, v{r}
v_permlane32_swap_b32 v{r}, v{t}
{op} v{r}, v{r}, v{t}''')
    a(f'v_max3_f32 v{M}, v{S}, v{S+1}, v{S+2}\nv_max_f32 v{M}, v{M}, v{S+3}')
    xl('v_max_f32', M, tmp)
    a(f'''s_lshl_b32 s3, s4, 4
v_add_u32 v{tmp+4}, s3, v{vMX}
s_mov_b64 exec, 15
ds_write_b32 v{tmp+4}, v{M}
s_mov_b64 exec, -1
s_waitcnt lgkmcnt(0)''')
    setflag(F_S3)
    for i in range(24, 64): a(f'v_mov_b32 v{BB+i}, 0')
    spin(vFL, F_S3-FL, tmp)
    a(f'''ds_read2_b32 {vr(tmp,2)}, v{vMX} offset0:0 offset1:4
ds_read2_b32 {vr(tmp+2,2)}, v{vMX} offset0:8 offset1:12
s_waitcnt lgkmcnt(0)
v_max3_f32 v{M}, v{tmp}, v{tmp+1}, v{tmp+2}
v_max_f32 v{M}, v{M}, v{tmp+3}''')
    for i in range(4): a(f'v_sub_f32 v{S+i}, v{S+i}, v{M}')
    for i in range(4): a(f'v_mul_f32 v{S+i}, 0x3fb8aa3b, v{S+i}')
    for i in range(4): a(f'v_exp_f32 v{S+i}, v{S+i}')
    a(f'''v_add_f32 v{L_}, v{S}, v{S+1}
v_add_f32 v{tmp}, v{S+2}, v{S+3}
v_cvt_pk_bf16_f32 v{tmp+2}, v{S}, v{S+1}
v_cvt_pk_bf16_f32 v{tmp+3}, v{S+2}, v{S+3}
v_add_f32 v{L_}, v{L_}, v{tmp}
ds_write_b64 v{vPW}, {vr(tmp+2,2)}''')
    xl('v_add_f32', L_, tmp)
    a(f'''s_mov_b64 exec, 15
ds_write_b32 v{tmp+4}, v{L_} offset:{LS-MX}
s_mov_b64 exec, -1''')
    a('s_waitcnt lgkmcnt(0)')
    setflag(F_S4)
    HA = X; WD = D
    for ks in range(2): a(f'ds_read_b64_tr_b16 {vr(WD+4*ks,2)}, v{vTR} offset:{LWD-LWO+4096*ks}\nds_read_b64_tr_b16 {vr(WD+4*ks+2,2)}, v{vTR} offset:{LWD-LWO+4096*ks+512}')
    for i in range(8): a(f'v_mov_b32 v{ACC+i}, 0')
    spin(vFL, F_S4-FL, tmp)
    OG = S; RL = v('RL', 2, 2)
    a(f'''ds_read2_b32 {vr(tmp,2)}, v{vMX} offset0:16 offset1:20
ds_read2_b32 {vr(tmp+2,2)}, v{vMX} offset0:24 offset1:28''')
    for u in range(2):
        a(f's_mov_b32 exec_lo, {0x000f000f << (4*u)}\ns_mov_b32 exec_hi, {0x000f000f << (4*u)}')
        for ks in range(8): a(f'ds_read_b128 {vr(BB+32*u+4*ks,4)}, v{vPB} offset:{64*ks}')
    a(f'''s_mov_b64 exec, -1
s_waitcnt lgkmcnt(0)
v_add_f32 v{tmp}, v{tmp}, v{tmp+1}
v_add_f32 v{tmp+2}, v{tmp+2}, v{tmp+3}
v_add_f32 v{tmp}, v{tmp}, v{tmp+2}
v_rcp_f32 v{RL}, v{tmp}
v_log_f32 v{tmp}, v{tmp}
v_mov_b32 v{tmp+1}, 0x3fb8aa3b
v_fma_f32 v{OG+2}, v{M}, v{tmp+1}, v{tmp}
v_mov_b32 v{OG+3}, s60''')
    a(hld)
    T(7)
    def pv(k0, k1):
        n = 2*(k1-k0); dep = 4
        items = [(ks, u) for ks in range(k0, k1) for u in range(2)]
        def mf(i):
            ks, u = items[i]
            a(f'v_mfma_f32_16x16x32_bf16 {vr(ACC,4)}, {vr(BA+8*ks+4*u,4)}, {vr(BB+32*u+4*ks,4)}, {vr(ACC,4)}')
        for i, (ks, u) in enumerate(items):
            r = BA+8*ks+4*u
            a(f'ds_read_b64_tr_b16 {vr(r,2)}, v{vTV+u} offset:{8192*ks}\nds_read_b64_tr_b16 {vr(r+2,2)}, v{vTV+u} offset:{8192*ks+1024}')
            if i >= dep: a(f's_waitcnt lgkmcnt({2*dep})'); mf(i-dep)
        for i in range(max(n-dep, 0), n):
            a(f's_waitcnt lgkmcnt({2*(n-1-i)})'); mf(i)
    if vsplit:
        PAD()
        spin(vFL, F_LD+8-FL, tmp, 1)
        pv(0, vs)
    PAD()
    a('s_barrier                          ; B1')
    T(8)
    pv(vs if vsplit else 0, 8)
    PAD()
    a(f'''s_mov_b32 exec_lo, 0x00ff00ff
s_mov_b32 exec_hi, 0x00ff00ff
s_cmp_eq_u32 s62, 0
v_pk_mul_f32 {vr(ACC,2)}, {vr(ACC,2)}, {vr(RL,2)} op_sel_hi:[1,0]
v_pk_mul_f32 {vr(ACC+2,2)}, {vr(ACC+2,2)}, {vr(RL,2)} op_sel_hi:[1,0]
v_cvt_pk_bf16_f32 v{OG}, v{ACC}, v{ACC+1}
v_cvt_pk_bf16_f32 v{OG+1}, v{ACC+2}, v{ACC+3}''')
    st2(f'buffer_store_dwordx4 {vr(OG,4)}, v{vPO}, s[44:47], 0 offen', 'po_st')
    a('s_mov_b64 exec, -1')
    T(9)
    tailblocks.append(f'''L_ph_r:
{hld}
s_sub_u32 s68, s68, 1
s_waitcnt vmcnt(0)
s_cbranch_scc0 L_ph
s_mov_b32 s68, 0
s_branch L_ph_d''')
    a(f'''s_waitcnt vmcnt(1)
L_ph:
v_cmp_ne_u32 vcc, s60, v{HG+1}
s_cbranch_vccnz L_ph_r
L_ph_d:
ds_write_b32 v{vHW}, v{HG}''')
    for ks in range(2): a(f'ds_read_b128 {vr(HA+4*ks,4)}, v{vAH} offset:{64*ks}')
    for k2 in range(2): a(f's_waitcnt lgkmcnt({1-k2})\nv_mfma_f32_16x16x32_bf16 {vr(ACC+4,4)}, {vr(WD+4*k2,4)}, {vr(HA+4*k2,4)}, {vr(ACC+4,4)}')
    PAD()
    a('s_mov_b32 exec_lo, 0x00030003\ns_mov_b32 exec_hi, 0x00030003\ns_cmp_eq_u32 s62, 0')
    for i in range(4): a(f'v_add_u32 v{ACC+4+i}, 0x80, v{ACC+4+i}')
    for i in range(4): a(f'v_perm_b32 v{ACC+4+i}, v{ACC+4+i}, v{OG+3}, s{20+i}')
    st2(f'buffer_store_dwordx4 {vr(ACC+4,4)}, v{vPS}, s[44:47], s67 offen', 'pfs')
    a('s_mov_b64 exec, -1')
    oit = [(G+4*i, vGO, '0', 512*i, [3]) for i in range(4)]
    if osleep == 'w': a('s_waitcnt vmcnt(0)')
    elif osleep: a(f's_sleep {osleep}')
    for it in oit: a(f'buffer_load_dwordx4 {vr(it[0],4)}, v{it[1]}, s[44:47], 0 offen offset:{it[3]} sc1')
    for i in range(4): a(f'v_mov_b32 v{ACC+i}, 0')
    wort = lambda ks: f'ds_read_b64_tr_b16 {vr(BB+4*ks,2)}, v{vTR} offset:{4096*ks}\nds_read_b64_tr_b16 {vr(BB+4*ks+2,2)}, v{vTR} offset:{4096*ks+512}'
    if b2a:
        a('s_barrier                          ; B2a')
        for ks in range(4): a(wort(ks))
    PAD()
    RB()
    ppoll(oit, 44, 'po', issued=True)
    T(10)
    if not (diag and keep and '#q' in keep): C(14)
    Wt = HG; U = D; Aa = v('Aa', 6, 2)
    a(f'''v_max3_f32 v{M}, v{G+2}, v{G+6}, v{G+10}
v_max_f32 v{M}, v{M}, v{G+14}
v_mov_b32 v{tmp}, v{M}''')
    for i in range(2): a(f'v_lshlrev_b32 v{U+4*i}, 16, v{G+4*i}')
    a(f'v_permlane16_swap_b32 v{M}, v{tmp}\nv_max_f32 v{M}, v{M}, v{tmp}\nv_mov_b32 v{tmp}, v{M}')
    for i in range(2, 4): a(f'v_lshlrev_b32 v{U+4*i}, 16, v{G+4*i}')
    a(f'v_permlane32_swap_b32 v{M}, v{tmp}\nv_max_f32 v{M}, v{M}, v{tmp}')
    for i in range(4): a(f'v_sub_f32 v{Wt+i}, v{G+4*i+2}, v{M}')
    for i in range(4): a(f'v_exp_f32 v{Wt+i}, v{Wt+i}\nv_and_b32 v{U+4*i+1}, 0xffff0000, v{G+4*i}\nv_lshlrev_b32 v{U+4*i+2}, 16, v{G+4*i+1}\nv_and_b32 v{U+4*i+3}, 0xffff0000, v{G+4*i+1}')
    PAD()
    sel = lambda i: ('op_sel_hi:[1,0,1]' if i % 2 == 0 else 'op_sel:[0,1,0] op_sel_hi:[1,1,1]')
    for e in (0, 2): a(f'v_pk_mul_f32 {vr(Aa+e,2)}, {vr(U+e,2)}, {vr(Wt,2)} op_sel_hi:[1,0]')
    a(f'v_pk_add_f32 {vr(Aa+4,2)}, {vr(Wt,2)}, {vr(Wt+2,2)}')
    for i in range(1, 4):
        for e in (0, 2): a(f'v_pk_fma_f32 {vr(Aa+e,2)}, {vr(U+4*i+e,2)}, {vr(Wt+(i&2),2)}, {vr(Aa+e,2)} {sel(i)}')
        if i == 1: a(f'v_add_f32 v{Aa+4}, v{Aa+4}, v{Aa+5}')
        if i == 2: a(f'v_mov_b32 v{Aa+5}, v{Aa+4}')
    a(f'''v_permlane32_swap_b32 v{Aa+4}, v{Aa+5}
v_permlane32_swap_b32 v{Aa}, v{Aa+1}
v_permlane32_swap_b32 v{Aa+2}, v{Aa+3}
v_add_f32 v{Aa+4}, v{Aa+4}, v{Aa+5}
v_add_f32 v{Aa}, v{Aa}, v{Aa+1}
v_add_f32 v{Aa+2}, v{Aa+2}, v{Aa+3}
v_mov_b32 v{Aa+5}, v{Aa+4}
v_permlane16_swap_b32 v{Aa}, v{Aa+2}
v_permlane16_swap_b32 v{Aa+4}, v{Aa+5}
v_add_f32 v{Aa+4}, v{Aa+4}, v{Aa+5}
v_add_f32 v{Aa}, v{Aa}, v{Aa+2}
v_rcp_f32 v{Aa+4}, v{Aa+4}
v_mul_f32 v{Aa}, v{Aa}, v{Aa+4}
v_cvt_pk_bf16_f32 v{Aa}, v{Aa}, v{Aa}
ds_write_b16 v{vOW}, v{Aa}''')
    PAD()
    a('s_waitcnt lgkmcnt(0)\ns_barrier                          ; B2')
    T(11)
    for ks in range(4):
        a(f'ds_read_b128 {vr(BA+4*ks,4)}, v{vAO} offset:{64*ks}')
        if not b2a: a(wort(ks))
    for ks in range(4):
        a(f's_waitcnt lgkmcnt({3-ks if b2a else 9-3*ks})')
        a(f'v_mfma_f32_16x16x32_bf16 {vr(ACC,4)}, {vr(BB+4*ks,4)}, {vr(BA+4*ks,4)}, {vr(ACC,4)}')
    PAD()
    a('s_mov_b32 exec_lo, 0x00030003\ns_mov_b32 exec_hi, 0x00030003')
    for i in range(4): a(f'v_perm_b32 v{ACC+i}, v{ACC+i}, v{OG+3}, s{20+i}')
    a(f'buffer_store_dwordx4 {vr(ACC,4)}, v{vPS}, s[44:47], s66 offen sc1')
    if b3: a('s_waitcnt vmcnt(0)\ns_barrier                          ; B3')
    if wb == 'all': a('s_cmp_lg_u32 s4, 0\ns_cbranch_scc1 L_nowb\nbuffer_wbl2 sc1\nL_nowb:')
    if wb == 'j0': a('s_or_b32 s3, s4, s6\ns_cbranch_scc1 L_nowb\nbuffer_wbl2 sc1\nL_nowb:')
    T(12)
    if diag:
        T(13)
        if diag != 'amp': a(f's_mov_b32 s{TSB+30}, 0')
        a('s_add_u32 s4, s4, 1')
    else: a('s_endpgm')
    if diag: a('L_fin:')
    if diag == 'ws': a(ts_store(16, 30, 4, srd=36))
    if diag == 'amp':
        A_, B_, sign, wave, K = amp[:5]
        if len(amp) > 5: a(f's_cmp_lg_u32 s5, {amp[5]}\ns_cbranch_scc1 L_end')
        ia, ib = NAMES.index(A_), NAMES.index(B_)
        a(f's_cmp_lg_u32 s4, {wave}\ns_cbranch_scc1 L_end\ns_waitcnt lgkmcnt(0)\ns_sub_u32 s3, s{TSB+2*ib}, s{TSB+2*ia}')
        if sign < 0: a('s_sub_u32 s3, 2000, s3')
        a(f'''s_min_u32 s3, s3, 4000
s_mul_i32 s3, s3, {K}
s_memrealtime s[34:35]
s_waitcnt lgkmcnt(0)
s_add_u32 s3, s3, s34
L_amp:
s_sleep 2
s_memrealtime s[34:35]
s_waitcnt lgkmcnt(0)
s_sub_u32 s7, s34, s3
s_cmp_lt_i32 s7, 0
s_cbranch_scc1 L_amp''')
    if diag: a('L_end:\ns_endpgm')
    for t in tailblocks: a(t)
    a(kdesc(KN+'_kernel', v.n))
    return hdr_ref + pad(a.text())

if __name__ == '__main__':
    open('k23.s', 'w').write(gen(None))
```
